```python
import torch

def _softmax(x, axis=-1):
    return torch.softmax(x, dim=axis)
def _gelu(x):
    return torch.nn.functional.gelu(x, approximate="tanh")
def _silu(x):
    return torch.nn.functional.silu(x)
def _sigmoid(x):
    return torch.sigmoid(x)
def _layernorm(x, axis=-1, eps=1e-5):
    m = x.mean(dim=axis, keepdim=True)
    v = x.var(dim=axis, keepdim=True, unbiased=False)
    return (x - m) / torch.sqrt(v + eps)
def _scatter_add(tgt, idx, src, axis=0):
    return tgt.clone().index_add_(axis, idx, src)
def _segment_sum(src, seg, n):
    out = torch.zeros((n,) + src.shape[1:], dtype=src.dtype)
    return out.index_add_(0, seg, src)
def _pad(x, pw):
    flat = tuple(v for pair in reversed(pw) for v in pair)
    return torch.nn.functional.pad(x, flat)

kernel_name = 'standalone__sliding_block_cached__decode'

def setup_inputs():

    _w = (lambda a: (lambda t: t.to(torch.bfloat16) if t.is_floating_point() else t)(torch.as_tensor(a)))
    B, Sq, D = 4, 1, 576
    Hq, Hkv, Sk, Dh = 32, 16, 8192, 128
    assert Hq % Hkv == 0, (Hq, Hkv)
    return {
        "x": _w((lambda *s: torch.randn(*s, dtype=torch.bfloat16) * 0.8)(B, Sq, D)),
        "k_cache": _w((lambda *s: torch.randn(*s, dtype=torch.bfloat16) * 0.8)(B, Hkv, Sk, Dh)),
        "v_cache": _w((lambda *s: torch.randn(*s, dtype=torch.bfloat16) * 0.05)(B, Hkv, Sk, Dh)),
        "wq": _w((lambda *s: torch.randn(*s, dtype=torch.bfloat16) * 0.8)(D, Hq * Dh) * (D ** -0.5)),
        "wo": _w((lambda *s: torch.randn(*s, dtype=torch.bfloat16) * 0.05)(Hq * Dh, D) * ((Hq * Dh) ** -0.5)),
    }

def reference(x, k_cache, v_cache, wq, wo):
    B, Sq, D = x.shape
    Hq, Dh = 32, 128
    Hkv, Sk = k_cache.shape[1], k_cache.shape[2]
    W = min(4096, max(256, Sk // 4))
    rep = Hq // Hkv
    q = (lambda x, *d: x.permute(*d))((x @ wq).reshape(B, Sq, Hq, Dh), 0, 2, 1, 3)
    k = (lambda x, n, axis: torch.repeat_interleave(x, n, dim=axis))(k_cache[:, :, Sk - W:, :], rep, axis=1)
    v = (lambda x, n, axis: torch.repeat_interleave(x, n, dim=axis))(v_cache[:, :, Sk - W:, :], rep, axis=1)
    scores = torch.einsum("bhqd,bhkd->bhqk", q, k) * (Dh ** -0.5)
    p = _softmax(scores, axis=-1)
    o = torch.einsum("bhqk,bhkd->bhqd", p, v)
    return (lambda x, *d: x.permute(*d))(o, 0, 2, 1, 3).reshape(B, Sq, Hq * Dh) @ wo
```

```python
import sys
NAME = "standalone__sliding_block_cached__decode_kernel"

ML    = 0
STATS = 64
QIMG  = 256
PIMG  = 768
AIMG  = 2816
XIMG  = 5120
W     = 9728
KIMG  = 28160
PART  = KIMG
LDS_BYTES = KIMG + 131072
WS_EPOCH = 0
WS_Q  = 4096
WS_OS = 69632
WS_O  = 131072
WS_P  = 786432
WS_TS = 4*1024*1024

SCALE_LOG2E = 0.08838834764831845 * 1.4426950408889634

def f2u(x):
    import struct
    return struct.unpack("<I", struct.pack("<f", x))[0]

class G:
    def __init__(s):
        s.L = []
    def __call__(s, t):
        for line in t.strip().split("\n"):
            s.L.append("    " + line.strip())
    def lab(s, t):
        s.L.append(t + ":")
    def c(s, t):
        s.L.append("    ; " + t)

def gen(depth=3, spin=200000, ts=False, mimic=False, nt_w=True, warm_out=True):
    g = G()
    hdr = []
    hdr.append(f"; @launch grid=(256,1,1) block=(1024,1,1) lds={LDS_BYTES}")
    hdr.append('.amdgcn_target "amdgcn-amd-amdhsa--gfx950"')
    hdr.append(".text")
    hdr.append(f".globl {NAME}")
    hdr.append(".p2align 8")
    hdr.append(f".type {NAME},@function")
    hdr.append(f"{NAME}:")
    NT = " nt"
    NTW = " nt" if nt_w else ""
    sK, sV, sWQ, sWO, sX, sOUT = "s[20:23]", "s[24:27]", "s[28:31]", "s[32:35]", "s[36:39]", "s[40:43]"
    WSB = "s[18:19]"
    HKV, J, B, S = "s44", "s45", "s46", "s47"
    KVB, ROT, TAG = "s48", "s49", "s50"
    T0, T1, T2, T3 = "s51", "s52", "s53", "s54"
    WAVE = "s3"
    def stamp(k):
        if ts:
            g(f"s_memrealtime s[{64+2*k}:{65+2*k}]")
    g("s_cmp_ge_u32 s2, 256")
    g("s_cbranch_scc1 L_end")
    if ts:
        for k in range(1, 13):
            g(f"s_mov_b32 s{64+2*k}, 0")
    stamp(0)
    g("s_load_dwordx16 s[4:19], s[0:1], 0")
    g(f"""
    v_lshrrev_b32 v1, 6, v0
    v_and_b32 v0, 63, v0
    v_readfirstlane_b32 {WAVE}, v1
    s_and_b32 {HKV}, s2, 15
    s_lshr_b32 {J}, s2, 4
    s_lshr_b32 {B}, {J}, 2
    s_and_b32 {S}, {J}, 3
    """)
    g(f"""
    s_lshl_b32 {T0}, {B}, 4
    s_add_u32 {T0}, {T0}, {HKV}
    s_lshl_b32 {KVB}, {T0}, 21
    s_lshl_b32 {T0}, {S}, 17
    s_add_u32 {KVB}, {KVB}, {T0}
    s_add_u32 {KVB}, {KVB}, 0x180000
    s_lshl_b32 {T0}, {WAVE}, 13
    s_add_u32 {KVB}, {KVB}, {T0}
    s_lshr_b32 {ROT}, s2, 3
    s_add_u32 {ROT}, {ROT}, {WAVE}
    """)
    g("""
    v_and_b32 v2, 15, v0
    v_lshrrev_b32 v3, 4, v0
    v_lshlrev_b32 v4, 4, v0
    """)
    g("""
    v_xor_b32 v1, v2, v3
    v_lshlrev_b32 v1, 4, v1
    v_lshl_add_u32 v5, v3, 8, v1
    v_xor_b32 v6, 64, v5
    v_xor_b32 v7, 0x80, v5
    v_xor_b32 v8, 0xc0, v5
    """)
    g("""
    v_lshrrev_b32 v1, 1, v0
    v_lshlrev_b32 v1, 13, v1
    v_and_b32 v9, 1, v0
    v_lshl_add_u32 v9, v9, 4, v1
    """)
    g("s_waitcnt lgkmcnt(0)")
    def srd(dst, lo, hi, size):
        a = int(dst[2:dst.index(":")])
        g(f"""
        s_mov_b32 s{a}, {lo}
        s_and_b32 s{a+1}, {hi}, 0xffff
        s_mov_b32 s{a+2}, {size}
        s_mov_b32 s{a+3}, 0x20000
        """)
    srd(sWQ, "s10", "s11", 576*8192)
    srd(sX, "s4", "s5", 4608)
    g(f"""
    s_mul_i32 {T0}, {WAVE}, {36*8192}
    s_lshl_b32 {T1}, {HKV}, 9
    s_add_u32 {T0}, {T0}, {T1}
    s_lshl_b32 {T1}, {J}, 5
    s_add_u32 {T0}, {T0}, {T1}
    s_mul_i32 {T1}, {WAVE}, {36*32}
    s_add_u32 m0, {T1}, {W}
    s_mov_b32 exec_lo, -1
    s_mov_b32 exec_hi, 0xf
    buffer_load_dwordx4 v9, {sWQ}, {T0} offen{NTW} lds
    s_add_u32 {T0}, {T0}, {18*8192}
    s_add_u32 m0, m0, {18*32}
    s_nop 0
    buffer_load_dwordx4 v9, {sWQ}, {T0} offen{NTW} lds
    s_mul_i32 {T0}, {WAVE}, 288
    s_add_u32 m0, {T0}, {XIMG}
    s_mov_b32 exec_lo, 0x3ffff
    s_mov_b32 exec_hi, 0
    buffer_load_dwordx4 v4, {sX}, {T0} offen lds
    s_mov_b64 exec, -1
    """)
    srd(sK, "s6", "s7", 0x8000000)
    srd(sV, "s8", "s9", 0x8000000)
    VREG = 10
    def stream_load(n):
        m = n & 7
        g(f"""
        s_add_u32 {T0}, {ROT}, {m}
        s_and_b32 {T0}, {T0}, 7
        s_lshl_b32 {T0}, {T0}, 10
        s_add_u32 {T0}, {T0}, {KVB}
        """)
        if n < 8:
            g(f"""
            s_lshl_b32 {T1}, {WAVE}, 13
            s_add_u32 m0, {T1}, {KIMG + m*1024}
            s_nop 0
            buffer_load_dwordx4 v{5 + (m & 3)}, {sK}, {T0} offen{NT} lds
            """)
        else:
            r = VREG + 4*m
            g(f"buffer_load_dwordx4 v[{r}:{r+3}], v4, {sV}, {T0} offen{NT}")
    g(f"s_cmp_eq_u32 {WAVE}, 0")
    g("s_cbranch_scc1 L_w0_front")
    for n in range(depth):
        stream_load(n)
    srd(sWO, "s12", "s13", 4096*1152)
    srd(sOUT, "s14", "s15", 4608)
    g(f"""
    s_cmp_eq_u32 {WAVE}, 1
    s_cbranch_scc0 L_noinit
    v_mov_b32 v110, 0xff800000
    v_mov_b32 v111, 0xff800000
    v_mov_b32 v112, 0
    v_mov_b32 v113, 0
    v_mov_b32 v1, {ML}
    ds_write_b128 v1, v[110:113]
    s_waitcnt lgkmcnt(0)
    """)
    g.lab("L_noinit")
    g(f"s_waitcnt vmcnt({depth})")
    stamp(1)
    g("s_barrier")
    for n in range(depth, 16):
        g(f"s_waitcnt vmcnt({depth-1})")
        stream_load(n)
    stamp(2)
    g("s_branch L_bar2")
    g.lab("L_w0_front")
    g("v_mov_b32 v1, 0")
    g(f"global_load_dword v126, v1, {WSB}")
    for n in range(16):
        stream_load(n)
    srd(sWO, "s12", "s13", 4096*1152)
    srd(sOUT, "s14", "s15", 4608)
    if warm_out:
        g(f"buffer_load_dword v125, v4, {sOUT}, 0 offen")
        g("s_waitcnt vmcnt(17)")
    else:
        g("s_waitcnt vmcnt(16)")
    stamp(1)
    g("s_barrier")
    g(f"""
    v_readfirstlane_b32 {TAG}, v126
    s_mul_i32 {TAG}, {TAG}, 1664525
    s_add_u32 {TAG}, {TAG}, 1013904223
    """)
    g(f"""
    v_and_b32 v1, 3, v0
    v_mul_u32_u24 v1, 1152, v1
    v_lshl_add_u32 v42, v3, 4, v1
    v_add_u32 v42, {XIMG}, v42
    v_lshrrev_b32 v1, 2, v2
    v_lshlrev_b32 v1, 5, v1
    v_lshl_add_u32 v1, v3, 8, v1
    v_and_b32 v43, 3, v0
    v_lshl_add_u32 v43, v43, 3, v1
    v_add_u32 v43, {W}, v43
    v_mov_b32 v44, 0
    v_mov_b32 v45, 0
    v_mov_b32 v46, 0
    v_mov_b32 v47, 0
    """)
    def qreads(grp):
        base = 48 + (grp % 3)*16
        for st in range(2):
            kk = grp*2 + st
            r = base + st*8
            g(f"ds_read_b128 v[{r}:{r+3}], v42 offset:{kk*64}")
            g(f"ds_read_b64_tr_b16 v[{r+4}:{r+5}], v43 offset:{kk*1024}")
            g(f"ds_read_b64_tr_b16 v[{r+6}:{r+7}], v43 offset:{kk*1024+128}")
    qreads(0); qreads(1)
    for grp in range(9):
        if grp < 8:
            g("s_waitcnt lgkmcnt(6)")
        else:
            g("s_waitcnt lgkmcnt(0)")
        base = 48 + (grp % 3)*16
        for st in range(2):
            r = base + st*8
            g(f"v_mfma_f32_16x16x32_bf16 v[44:47], v[{r}:{r+3}], v[{r+4}:{r+7}], v[44:47]")
        if grp + 2 < 9:
            qreads(grp + 2)
    g(f"""
    s_mov_b32 s56, 0xffff0000
    s_mov_b32 s57, 0
    s_mov_b32 s58, 0
    s_mov_b32 s59, 0xffff
    s_mov_b32 s60, 0
    s_mov_b32 s61, 0xffff0000
    s_nop 4
    v_cndmask_b32 v48, v44, v45, s[56:57]
    v_cndmask_b32 v48, v48, v46, s[58:59]
    v_cndmask_b32 v48, v48, v47, s[60:61]
    s_nop 1
    v_mov_b32_dpp v49, v48 quad_perm:[1,0,3,2] row_mask:0xf bank_mask:0xf
    v_cvt_pk_bf16_f32 v50, v48, v49
    v_mov_b32 v51, {TAG}
    """)
    g(f"""
    s_lshl_b32 {T0}, {HKV}, 12
    s_lshl_b32 {T1}, {J}, 6
    s_add_u32 {T0}, {T0}, {T1}
    s_add_u32 {T0}, {T0}, {WS_Q}
    v_lshlrev_b32 v52, 10, v3
    v_lshrrev_b32 v1, 1, v2
    v_lshl_add_u32 v52, v1, 3, v52
    v_add_u32 v52, {T0}, v52
    s_mov_b32 exec_lo, 0x55555555
    s_mov_b32 exec_hi, 0x55555555
    global_store_dwordx2 v52, v[50:51], {WSB} sc1
    s_mov_b64 exec, -1
    """)
    stamp(2)
    g(f"""
    s_lshl_b32 {T0}, {HKV}, 12
    s_lshl_b32 {T1}, {B}, 10
    s_add_u32 {T0}, {T0}, {T1}
    s_add_u32 {T0}, {T0}, {WS_Q}
    v_add_u32 v52, {T0}, v4
    s_mov_b32 {T2}, 0
    """)
    g.lab("L_qpoll")
    g(f"""
    global_load_dwordx4 v[56:59], v52, {WSB} sc1
    s_add_u32 {T2}, {T2}, 1
    s_waitcnt vmcnt(0)
    v_cmp_eq_u32 vcc, {TAG}, v57
    v_cmp_eq_u32 s[56:57], {TAG}, v59
    s_nop 1
    s_and_b64 vcc, vcc, s[56:57]
    s_cmp_eq_u64 vcc, -1
    s_cbranch_scc1 L_qok
    s_cmp_lt_u32 {T2}, {spin}
    s_cbranch_scc1 L_qpoll
    """)
    g.lab("L_qok")
    g(f"""
    v_mov_b32 v57, v58
    v_lshlrev_b32 v1, 3, v0
    ds_write_b64 v1, v[56:57] offset:{QIMG}
    v_mov_b32 v1, 0
    v_mov_b32 v57, {TAG}
    ds_write_b32 v1, v57 offset:{ML+16}
    s_waitcnt lgkmcnt(0)
    """)
    stamp(3)
    g.lab("L_bar2")
    g("s_barrier")
    stamp(4)
    g(f"""
    v_mov_b32 v1, 0
    ds_read_b32 v126, v1 offset:{ML+16}
    """)
    g(f"""
    v_and_b32 v1, 1, v0
    v_lshlrev_b32 v1, 8, v1
    v_lshl_add_u32 v1, v3, 4, v1
    ds_read_b128 v[74:77], v1 offset:{QIMG}
    ds_read_b128 v[78:81], v1 offset:{QIMG+64}
    ds_read_b128 v[82:85], v1 offset:{QIMG+128}
    ds_read_b128 v[86:89], v1 offset:{QIMG+192}
    v_xor_b32 v1, v2, v3
    v_lshlrev_b32 v1, 4, v1
    v_lshl_add_u32 v1, v2, 8, v1
    s_lshl_b32 {T0}, {WAVE}, 13
    s_add_u32 {T0}, {T0}, {KIMG}
    v_add_u32 v110, {T0}, v1
    v_xor_b32 v111, 64, v110
    v_xor_b32 v112, 0x80, v110
    v_xor_b32 v113, 0xc0, v110
    """)
    for t in range(2):
        for j in range(4):
            r = 42 + (t*4 + j)*4
            g(f"ds_read_b128 v[{r}:{r+3}], v{110+j} offset:{t*4096}")
    g(f"""
    v_cmp_le_u32 vcc, 18, v0
    v_mov_b32 v1, 0
    v_mov_b32 v114, {1152 - 18*16}
    v_cndmask_b32 v1, v1, v114, vcc
    v_add_u32 v114, v1, v4
    s_lshl_b32 {T0}, {HKV}, 8
    s_lshl_b32 {T1}, {B}, 6
    s_add_u32 {T0}, {T0}, {T1}
    s_lshl_b32 {T1}, {WAVE}, 2
    s_add_u32 {T0}, {T0}, {T1}
    s_mul_i32 {T0}, {T0}, 1152
    s_mul_i32 {T1}, {S}, 288
    s_add_u32 {T0}, {T0}, {T1}
    s_mul_i32 {T1}, {WAVE}, {4*288}
    s_add_u32 m0, {T1}, {W}
    s_mov_b32 exec_lo, -1
    s_mov_b32 exec_hi, 0xf
    buffer_load_dwordx4 v114, {sWO}, {T0} offen{NTW} lds
    s_add_u32 {T0}, {T0}, {2*1152}
    s_add_u32 m0, m0, {2*288}
    s_nop 0
    buffer_load_dwordx4 v114, {sWO}, {T0} offen{NTW} lds
    s_mov_b64 exec, -1
    """)
    g("""
    v_mov_b32 v90, 0
    v_mov_b32 v91, 0
    v_mov_b32 v92, 0
    v_mov_b32 v93, 0
    v_mov_b32 v94, 0
    v_mov_b32 v95, 0
    v_mov_b32 v96, 0
    v_mov_b32 v97, 0
    s_waitcnt lgkmcnt(4)
    """)
    for j in range(4):
        g(f"v_mfma_f32_16x16x32_bf16 v[90:93], v[{74+4*j}:{77+4*j}], v[{42+4*j}:{45+4*j}], v[90:93]")
    g("s_waitcnt lgkmcnt(0)")
    for j in range(4):
        g(f"v_mfma_f32_16x16x32_bf16 v[94:97], v[{74+4*j}:{77+4*j}], v[{58+4*j}:{61+4*j}], v[94:97]")
    g(f"v_readfirstlane_b32 {TAG}, v126")
    g("""
    v_and_b32 v1, 1, v0
    v_cmp_eq_u32 vcc, 1, v1
    v_mov_b32 v110, 0x0c0c0100
    v_mov_b32 v111, 0x01000c0c
    v_mov_b32 v112, 0x0c0c0302
    v_mov_b32 v113, 0x03020c0c
    v_cndmask_b32 v110, v110, v111, vcc
    v_cndmask_b32 v112, v112, v113, vcc
    v_mov_b32 v111, 0x0c0c0c0c
    v_bfe_u32 v1, v0, 1, 2
    """)
    for r in range(4):
        g(f"v_cmp_eq_u32 vcc, {r}, v1")
        g("s_nop 1")
        g(f"v_cndmask_b32 v{102+r}, v111, v110, vcc")
        g(f"v_cndmask_b32 v{106+r}, v111, v112, vcc")
    g("""
    s_mov_b32 s56, 0xffff0000
    s_mov_b32 s57, 0xffff0000
    s_mov_b32 s58, 0
    s_mov_b32 s59, -1
    v_cndmask_b32 v110, v90, v94, s[56:57]
    v_cndmask_b32 v111, v91, v95, s[56:57]
    v_cndmask_b32 v110, v110, v111, s[58:59]
    """)
    if mimic:
        g(f"""
        v_cvt_pk_bf16_f32 v110, v110, v110
        v_lshlrev_b32 v110, 16, v110
        v_mul_f32 v110, 0x{f2u(0.08838834764831845):08x}, v110
        v_cvt_pk_bf16_f32 v110, v110, v110
        v_lshlrev_b32 v110, 16, v110
        """)
        CS = 1.4426950408889634
    else:
        CS = SCALE_LOG2E
    g("""
    s_nop 1
    v_max_f32_dpp v111, v110, v110 row_ror:8 row_mask:0xf bank_mask:0xf
    s_nop 1
    v_max_f32_dpp v111, v111, v111 row_ror:4 row_mask:0xf bank_mask:0xf
    s_nop 1
    v_max_f32_dpp v111, v111, v111 row_ror:2 row_mask:0xf bank_mask:0xf
    s_nop 1
    v_max_f32_dpp v111, v111, v111 row_ror:1 row_mask:0xf bank_mask:0xf
    s_nop 0
    v_mov_b32 v112, v111
    s_nop 1
    v_permlane16_swap_b32 v111, v112
    s_nop 1
    v_max_f32 v111, v111, v112
    """)
    g(f"""
    v_lshrrev_b32 v1, 5, v0
    v_lshlrev_b32 v113, 2, v1
    s_mov_b32 exec_lo, 1
    s_mov_b32 exec_hi, 1
    ds_max_f32 v113, v111 offset:{ML}
    s_mov_b64 exec, -1
    s_waitcnt lgkmcnt(0)
    s_barrier
    ds_read_b32 v112, v113 offset:{ML}
    s_mov_b32 {T0}, 0x{f2u(CS):08x}
    """)
    g(f"""
    v_and_b32 v114, 3, v0
    v_lshlrev_b32 v114, 4, v114
    v_bfe_u32 v115, v0, 2, 3
    v_lshl_add_u32 v114, v115, 1, v114
    v_lshl_add_u32 v114, v1, 6, v114
    s_lshl_b32 {T1}, {WAVE}, 7
    s_add_u32 {T1}, {T1}, {PIMG}
    v_add_u32 v114, {T1}, v114
    v_lshrrev_b32 v115, 3, v2
    v_lshlrev_b32 v115, 6, v115
    v_lshl_add_u32 v115, v3, 4, v115
    v_add_u32 v115, {T1}, v115
    s_waitcnt lgkmcnt(0)
    v_mul_f32 v112, {T0}, v112
    v_fma_f32 v110, v110, {T0}, -v112
    v_exp_f32 v110, v110
    s_nop 0
    v_cvt_pk_bf16_f32 v111, v110, v110
    ds_write_b16 v114, v111
    """)
    g(f"""
    v_lshlrev_b32 v110, 16, v111
    s_nop 1
    v_add_f32_dpp v110, v110, v110 row_ror:8 row_mask:0xf bank_mask:0xf
    s_nop 1
    v_add_f32_dpp v110, v110, v110 row_ror:4 row_mask:0xf bank_mask:0xf
    s_nop 1
    v_add_f32_dpp v110, v110, v110 row_ror:2 row_mask:0xf bank_mask:0xf
    s_nop 1
    v_add_f32_dpp v110, v110, v110 row_ror:1 row_mask:0xf bank_mask:0xf
    s_nop 0
    v_mov_b32 v116, v110
    s_nop 1
    v_permlane16_swap_b32 v110, v116
    s_nop 1
    v_add_f32 v110, v110, v116
    s_waitcnt lgkmcnt(0)
    ds_read_b128 v[116:119], v115
    s_mov_b32 exec_lo, 1
    s_mov_b32 exec_hi, 1
    ds_add_f32 v113, v110 offset:{ML+8}
    s_mov_b64 exec, -1
    v_mov_b32 v98, 0
    v_mov_b32 v99, 0
    v_mov_b32 v100, 0
    v_mov_b32 v101, 0
    s_waitcnt lgkmcnt(1)
    """)
    for n in range(8):
        src = 116 + (n >> 1)
        sel = 102 + (4 if (n & 1) else 0)
        for r in range(4):
            g(f"v_perm_b32 v{42+4*n+r}, v{src}, v{src}, v{sel+r}")
    stamp(5)
    g("s_nop 0")
    for n in range(8):
        g(f"s_waitcnt vmcnt({7-n+2})")
        g(f"v_mfma_f32_16x16x32_bf16 v[98:101], v[{42+4*n}:{45+4*n}], v[{VREG+4*n}:{VREG+4*n+3}], v[98:101]")
    stamp(6)
    g(f"""
    s_lshl_b32 {T0}, {WAVE}, 10
    v_add_u32 v1, {T0}, v4
    s_nop 5
    ds_write_b128 v1, v[98:101] offset:{PART}
    s_waitcnt lgkmcnt(0)
    s_barrier
    """)
    stamp(7)
    g(f"s_cmp_eq_u32 {WAVE}, 9")
    g("s_cbranch_scc0 L_gather1")
    for w in range(8):
        g(f"ds_read_b128 v[{42+4*w}:{45+4*w}], v4 offset:{PART + w*1024}")
    g(f"""
    v_lshrrev_b32 v1, 5, v0
    v_lshlrev_b32 v113, 2, v1
    ds_read_b32 v110, v113 offset:{ML}
    ds_read_b32 v111, v113 offset:{ML+8}
    """)
    g("s_waitcnt lgkmcnt(2)")
    for w in range(8, 15):
        g(f"ds_read_b128 v[{42+4*w}:{45+4*w}], v4 offset:{PART + w*1024}")
    for w in range(1, 8):
        g(f"v_pk_add_f32 v[42:43], v[42:43], v[{42+4*w}:{43+4*w}]")
        g(f"v_pk_add_f32 v[44:45], v[44:45], v[{44+4*w}:{45+4*w}]")
    g(f"ds_read_b128 v[46:49], v4 offset:{PART + 15*1024}")
    g(f"""
    s_lshl_b32 {T0}, {HKV}, 4
    s_add_u32 {T0}, {T0}, {J}
    s_lshl_b32 {T1}, {T0}, 11
    s_add_u32 {T1}, {T1}, {WS_O}
    v_lshlrev_b32 v114, 10, v1
    v_lshl_add_u32 v114, v2, 6, v114
    v_and_b32 v115, 1, v3
    v_lshl_add_u32 v114, v115, 5, v114
    v_add_u32 v114, {T1}, v114
    s_lshl_b32 {T1}, {T0}, 5
    s_add_u32 {T1}, {T1}, {WS_OS}
    v_lshlrev_b32 v115, 4, v1
    v_add_u32 v115, {T1}, v115
    s_mov_b32 {T2}, 0x{f2u(CS):08x}
    v_mov_b32 v117, {TAG}
    v_mov_b32 v119, {TAG}
    s_waitcnt lgkmcnt(1)
    v_mul_f32 v116, {T2}, v110
    v_mov_b32 v118, v111
    """)
    for w in range(8, 15):
        g(f"v_pk_add_f32 v[42:43], v[42:43], v[{42+4*w}:{43+4*w}]")
        g(f"v_pk_add_f32 v[44:45], v[44:45], v[{44+4*w}:{45+4*w}]")
    g(f"""
    s_waitcnt lgkmcnt(0)
    v_pk_add_f32 v[42:43], v[42:43], v[46:47]
    v_pk_add_f32 v[44:45], v[44:45], v[48:49]
    v_mov_b32 v51, {TAG}
    v_mov_b32 v53, {TAG}
    v_mov_b32 v55, {TAG}
    v_mov_b32 v57, {TAG}
    v_mov_b32 v50, v42
    v_mov_b32 v52, v43
    v_mov_b32 v54, v44
    v_mov_b32 v56, v45
    global_store_dwordx4 v114, v[50:53], {WSB} sc1
    global_store_dwordx4 v114, v[54:57], {WSB} offset:16 sc1
    s_mov_b32 exec_lo, 1
    s_mov_b32 exec_hi, 1
    global_store_dwordx4 v115, v[116:119], {WSB} sc1
    s_mov_b64 exec, -1
    """)
    stamp(8)
    g.lab("L_gather1")
    g(f"""
    s_lshl_b32 {T0}, {HKV}, 4
    s_add_u32 {T0}, {T0}, {WAVE}
    s_lshl_b32 {T1}, {T0}, 11
    s_lshl_b32 {T2}, {B}, 9
    s_add_u32 {T1}, {T1}, {T2}
    s_add_u32 {T1}, {T1}, {WS_O}
    v_lshlrev_b32 v110, 3, v0
    v_add_u32 v110, {T1}, v110
    s_lshl_b32 {T0}, {T0}, 5
    s_lshr_b32 {T2}, {B}, 1
    s_lshl_b32 {T2}, {T2}, 4
    s_add_u32 {T0}, {T0}, {T2}
    s_add_u32 {T0}, {T0}, {WS_OS}
    v_mov_b32 v111, {T0}
    s_mov_b32 {T2}, 0
    """)
    g.lab("L_opoll")
    g(f"""
    global_load_dwordx2 v[42:43], v110, {WSB} sc1
    global_load_dwordx4 v[44:47], v111, {WSB} sc1
    s_add_u32 {T2}, {T2}, 1
    s_waitcnt vmcnt(0)
    v_cmp_eq_u32 vcc, {TAG}, v43
    v_cmp_eq_u32 s[56:57], {TAG}, v45
    v_cmp_eq_u32 s[58:59], {TAG}, v47
    s_nop 1
    s_and_b64 vcc, vcc, s[56:57]
    s_and_b64 vcc, vcc, s[58:59]
    s_cmp_eq_u64 vcc, -1
    s_cbranch_scc1 L_ook
    s_cmp_lt_u32 {T2}, {spin}
    s_cbranch_scc1 L_opoll
    """)
    g.lab("L_ook")
    g(f"""
    v_cvt_pk_bf16_f32 v42, v42, v42
    s_mul_i32 {T0}, {WAVE}, 144
    v_lshlrev_b32 v1, 1, v0
    v_add_u32 v1, {T0}, v1
    ds_write_b16 v1, v42 offset:{AIMG}
    v_mov_b32 v45, v46
    s_lshl_b32 {T0}, {WAVE}, 3
    v_mov_b32 v1, {T0}
    s_mov_b64 exec, 1
    ds_write_b64 v1, v[44:45] offset:{STATS}
    s_mov_b64 exec, -1
    s_waitcnt lgkmcnt(0)
    s_barrier
    """)
    stamp(9)
    g(f"s_cmp_lt_u32 {WAVE}, 9")
    g("s_cbranch_scc0 L_notproj")
    g(f"""
    v_mul_u32_u24 v1, 144, v2
    v_lshl_add_u32 v1, v3, 4, v1
    ds_read_b128 v[42:45], v1 offset:{AIMG}
    ds_read_b128 v[46:49], v1 offset:{AIMG+64}
    v_lshrrev_b32 v110, 2, v2
    v_lshl_add_u32 v110, v3, 3, v110
    v_mul_u32_u24 v110, 288, v110
    v_and_b32 v111, 3, v0
    v_lshl_add_u32 v110, v111, 3, v110
    s_lshl_b32 {T0}, {WAVE}, 5
    s_add_u32 {T0}, {T0}, {W}
    v_add_u32 v110, {T0}, v110
    ds_read_b64_tr_b16 v[50:51], v110
    ds_read_b64_tr_b16 v[52:53], v110 offset:{4*288}
    ds_read_b64_tr_b16 v[54:55], v110 offset:{32*288}
    ds_read_b64_tr_b16 v[56:57], v110 offset:{36*288}
    v_lshlrev_b32 v111, 5, v3
    v_mov_b32 v66, 0
    v_mov_b32 v67, 0
    v_mov_b32 v68, 0
    v_mov_b32 v69, 0
    ds_read_b128 v[58:61], v111 offset:{STATS}
    ds_read_b128 v[62:65], v111 offset:{STATS+16}
    s_waitcnt lgkmcnt(2)
    v_mfma_f32_16x16x32_bf16 v[66:69], v[42:45], v[50:53], v[66:69]
    v_mfma_f32_16x16x32_bf16 v[66:69], v[46:49], v[54:57], v[66:69]
    s_waitcnt lgkmcnt(0)
    v_max3_f32 v70, v58, v60, v62
    v_max_f32 v70, v70, v64
    v_sub_f32 v58, v58, v70
    v_sub_f32 v60, v60, v70
    v_sub_f32 v62, v62, v70
    v_sub_f32 v64, v64, v70
    v_exp_f32 v58, v58
    v_exp_f32 v60, v60
    v_exp_f32 v62, v62
    v_exp_f32 v64, v64
    s_nop 0
    v_mul_f32 v71, v58, v59
    v_fmac_f32 v71, v60, v61
    v_fmac_f32 v71, v62, v63
    v_fmac_f32 v71, v64, v65
    v_rcp_f32 v71, v71
    v_mul_f32 v72, v58, v66
    v_fmac_f32 v72, v60, v67
    v_fmac_f32 v72, v62, v68
    v_fmac_f32 v72, v64, v69
    v_mul_f32 v72, v72, v71
    v_mov_b32 v73, {TAG}
    """)
    g(f"""
    s_mul_i32 {T0}, {S}, {4*9*8192}
    s_lshl_b32 {T1}, {WAVE}, 13
    s_add_u32 {T0}, {T0}, {T1}
    s_lshl_b32 {T1}, {HKV}, 2
    s_add_u32 {T1}, {T1}, {B}
    s_lshl_b32 {T1}, {T1}, 7
    s_add_u32 {T0}, {T0}, {T1}
    s_add_u32 {T0}, {T0}, {WS_P}
    v_mul_u32_u24 v1, {9*8192}, v3
    v_lshl_add_u32 v1, v2, 3, v1
    v_add_u32 v1, {T0}, v1
    global_store_dwordx2 v1, v[72:73], {WSB} sc1
    """)
    stamp(10)
    g("s_branch L_fin")
    g.lab("L_notproj")
    g(f"""
    s_cmp_eq_u32 {WAVE}, 15
    s_cbranch_scc0 L_fin
    s_cmp_lt_u32 s2, 144
    s_cbranch_scc0 L_fin
    s_and_b32 {T0}, s2, 3
    s_bfe_u32 {T1}, s2, 0x20002
    s_lshr_b32 {T2}, s2, 4
    s_lshl_b32 {T3}, {T0}, 2
    s_add_u32 {T3}, {T3}, {T1}
    s_mul_i32 {T3}, {T3}, 9
    s_add_u32 {T3}, {T3}, {T2}
    s_lshl_b32 {T3}, {T3}, 13
    s_add_u32 {T3}, {T3}, {WS_P}
    v_add_u32 v110, {T3}, v4
    s_mul_i32 {T1}, {T1}, 1152
    s_mul_i32 {T0}, {T0}, 288
    s_add_u32 {T1}, {T1}, {T0}
    s_lshl_b32 {T2}, {T2}, 5
    s_add_u32 {T1}, {T1}, {T2}
    v_lshlrev_b32 v111, 2, v0
    v_add_u32 v111, {T1}, v111
    s_mov_b32 {T2}, 0
    """)
    g.lab("L_ppoll")
    for n in range(8):
        g(f"global_load_dwordx4 v[{42+4*n}:{45+4*n}], v110, {WSB} offset:{n*1024 if n < 4 else 0} sc1" if n < 4 else
          f"global_load_dwordx4 v[{42+4*n}:{45+4*n}], v112, {WSB} offset:{(n-4)*1024} sc1")
        if n == 0:
            g("v_add_u32 v112, 4096, v110")
    g(f"""
    s_add_u32 {T2}, {T2}, 1
    s_mov_b64 s[56:57], -1
    """)
    for n in range(8):
        g(f"s_waitcnt vmcnt({7-n})")
        g(f"v_cmp_eq_u32 vcc, {TAG}, v{43+4*n}")
        g(f"v_cmp_eq_u32 s[58:59], {TAG}, v{45+4*n}")
        g("s_nop 1")
        g("s_and_b64 s[56:57], s[56:57], vcc")
        g("s_and_b64 s[56:57], s[56:57], s[58:59]")
    g(f"""
    s_cmp_eq_u64 s[56:57], -1
    s_cbranch_scc1 L_pok
    s_cmp_lt_u32 {T2}, {spin}
    s_cbranch_scc1 L_ppoll
    """)
    g.lab("L_pok")
    for n in range(1, 8):
        g(f"v_add_f32 v42, v42, v{42+4*n}")
        g(f"v_add_f32 v44, v44, v{44+4*n}")
    g("""
    s_nop 1
    v_add_f32_dpp v42, v42, v42 row_ror:8 row_mask:0xf bank_mask:0xf
    v_add_f32_dpp v44, v44, v44 row_ror:8 row_mask:0xf bank_mask:0xf
    s_nop 0
    v_mov_b32 v43, v42
    v_mov_b32 v45, v44
    s_nop 1
    v_permlane16_swap_b32 v42, v43
    v_permlane16_swap_b32 v44, v45
    s_nop 1
    v_add_f32 v42, v42, v43
    v_add_f32 v44, v44, v45
    s_nop 0
    v_mov_b32 v43, v42
    v_mov_b32 v45, v44
    s_nop 1
    v_permlane32_swap_b32 v42, v43
    v_permlane32_swap_b32 v44, v45
    s_nop 1
    v_add_f32 v42, v42, v43
    v_add_f32 v44, v44, v45
    s_nop 0
    v_cvt_pk_bf16_f32 v42, v42, v44
    s_mov_b64 exec, 0xff
    """)
    g(f"buffer_store_dword v42, v111, {sOUT}, 0 offen")
    g("s_mov_b64 exec, -1")
    g(f"""
    s_cmp_eq_u32 s2, 0
    s_cbranch_scc0 L_fin
    v_mov_b32 v1, 0
    v_mov_b32 v43, {TAG}
    s_mov_b64 exec, 1
    global_store_dword v1, v43, {WSB} sc1
    s_mov_b64 exec, -1
    """)
    g.lab("L_fin")
    if ts:
        g("s_memrealtime s[90:91]")
        g("s_waitcnt lgkmcnt(0)")
        g(f"""
        s_lshl_b32 {T0}, s2, 4
        s_add_u32 {T0}, {T0}, {WAVE}
        s_lshl_b32 {T0}, {T0}, 7
        s_add_u32 {T0}, {T0}, {WS_TS}
        v_mov_b32 v1, {T0}
        s_mov_b64 exec, 1
        """)
        for k in range(13):
            g(f"v_mov_b32 v2, s{64+2*k}")
            g(f"global_store_dword v1, v2, {WSB} offset:{4*k}")
        g("v_mov_b32 v2, s90")
        g(f"global_store_dword v1, v2, {WSB} offset:60")
    g.lab("L_end")
    g("s_endpgm")
    tail = f"""
.section .rodata,"a"
.p2align 6
.amdhsa_kernel {NAME}
  .amdhsa_next_free_vgpr 128
  .amdhsa_next_free_sgpr 96
  .amdhsa_accum_offset 128
  .amdhsa_group_segment_fixed_size 0
  .amdhsa_kernarg_size 64
  .amdhsa_user_sgpr_count 2
  .amdhsa_user_sgpr_kernarg_segment_ptr 1
  .amdhsa_system_sgpr_workgroup_id_x 1
.end_amdhsa_kernel
"""
    return "\n".join(hdr) + "\n" + "\n".join(g.L) + tail

if __name__ == "__main__":
    import argparse
    ap = argparse.ArgumentParser()
    ap.add_argument("-o", default="k.s")
    ap.add_argument("--depth", type=int, default=3)
    ap.add_argument("--ts", action="store_true")
    ap.add_argument("--mimic", action="store_true")
    ap.add_argument("--spin", type=int, default=200000)
    ap.add_argument("--defw", action="store_true")
    a = ap.parse_args()
    open(a.o, "w").write(gen(depth=a.depth, ts=a.ts, mimic=a.mimic, spin=a.spin, nt_w=not a.defw))
```

```python
import sys
NAME = "standalone__sliding_block_cached__decode_kernel"

ML    = 0
STATS = 64
QIMG  = 256
PIMG  = 768
AIMG  = 2816
XIMG  = 5120
W     = 9728
KIMG  = 28160
PART  = KIMG
LDS_BYTES = KIMG + 131072
WS_EPOCH = 0
WS_Q  = 4096
WS_OS = 69632
WS_O  = 131072
WS_P  = 786432
WS_TS = 4*1024*1024

SCALE_LOG2E = 0.08838834764831845 * 1.4426950408889634

def f2u(x):
    import struct
    return struct.unpack("<I", struct.pack("<f", x))[0]

class G:
    def __init__(s):
        s.L = []
    def __call__(s, t):
        for line in t.strip().split("\n"):
            s.L.append("    " + line.strip())
    def lab(s, t):
        s.L.append(t + ":")
    def c(s, t):
        s.L.append("    ; " + t)

def gen(depth=3, spin=200000, ts=False, mimic=False, nt_w=True, warm_out=True, dbgts=False):
    ts = ts or dbgts
    g = G()
    hdr = []
    hdr.append(f"; @launch grid=(256,1,1) block=(1024,1,1) lds={LDS_BYTES}")
    hdr.append('.amdgcn_target "amdgcn-amd-amdhsa--gfx950"')
    hdr.append(".text")
    hdr.append(f".globl {NAME}")
    hdr.append(".p2align 8")
    hdr.append(f".type {NAME},@function")
    hdr.append(f"{NAME}:")
    NT = " nt"
    NTW = " nt" if nt_w else ""
    sK, sV, sWQ, sWO, sX, sOUT = "s[20:23]", "s[24:27]", "s[28:31]", "s[32:35]", "s[36:39]", "s[40:43]"
    WSB = "s[18:19]"
    HKV, J, B, S = "s44", "s45", "s46", "s47"
    KVB, ROT, TAG = "s48", "s49", "s50"
    T0, T1, T2, T3 = "s51", "s52", "s53", "s54"
    WAVE = "s3"
    def stamp(k):
        if ts:
            g(f"s_memrealtime s[{64+2*k}:{65+2*k}]")
    g("s_cmp_ge_u32 s2, 256")
    g("s_cbranch_scc1 L_end")
    if ts:
        for k in range(1, 13):
            g(f"s_mov_b32 s{64+2*k}, 0")
    stamp(0)
    g("s_load_dwordx16 s[4:19], s[0:1], 0")
    g(f"""
    v_lshrrev_b32 v1, 6, v0
    v_and_b32 v0, 63, v0
    v_readfirstlane_b32 {WAVE}, v1
    s_and_b32 {HKV}, s2, 15
    s_lshr_b32 {J}, s2, 4
    s_lshr_b32 {B}, {J}, 2
    s_and_b32 {S}, {J}, 3
    """)
    g(f"""
    s_lshl_b32 {T0}, {B}, 4
    s_add_u32 {T0}, {T0}, {HKV}
    s_lshl_b32 {KVB}, {T0}, 21
    s_lshl_b32 {T0}, {S}, 17
    s_add_u32 {KVB}, {KVB}, {T0}
    s_add_u32 {KVB}, {KVB}, 0x180000
    s_lshl_b32 {T0}, {WAVE}, 13
    s_add_u32 {KVB}, {KVB}, {T0}
    s_lshr_b32 {ROT}, s2, 3
    s_add_u32 {ROT}, {ROT}, {WAVE}
    """)
    g("""
    v_and_b32 v2, 15, v0
    v_lshrrev_b32 v3, 4, v0
    v_lshlrev_b32 v4, 4, v0
    """)
    g("""
    v_xor_b32 v1, v2, v3
    v_lshlrev_b32 v1, 4, v1
    v_lshl_add_u32 v5, v3, 8, v1
    v_xor_b32 v6, 64, v5
    v_xor_b32 v7, 0x80, v5
    v_xor_b32 v8, 0xc0, v5
    """)
    g("""
    v_lshrrev_b32 v1, 1, v0
    v_lshlrev_b32 v1, 13, v1
    v_and_b32 v9, 1, v0
    v_lshl_add_u32 v9, v9, 4, v1
    """)
    g("s_waitcnt lgkmcnt(0)")
    def srd(dst, lo, hi, size):
        a = int(dst[2:dst.index(":")])
        g(f"""
        s_mov_b32 s{a}, {lo}
        s_and_b32 s{a+1}, {hi}, 0xffff
        s_mov_b32 s{a+2}, {size}
        s_mov_b32 s{a+3}, 0x20000
        """)
    srd(sWQ, "s10", "s11", 576*8192)
    srd(sX, "s4", "s5", 4608)
    g(f"""
    s_mul_i32 {T0}, {WAVE}, {36*8192}
    s_lshl_b32 {T1}, {HKV}, 9
    s_add_u32 {T0}, {T0}, {T1}
    s_lshl_b32 {T1}, {J}, 5
    s_add_u32 {T0}, {T0}, {T1}
    s_mul_i32 {T1}, {WAVE}, {36*32}
    s_add_u32 m0, {T1}, {W}
    s_mov_b32 exec_lo, -1
    s_mov_b32 exec_hi, 0xf
    buffer_load_dwordx4 v9, {sWQ}, {T0} offen{NTW} lds
    s_add_u32 {T0}, {T0}, {18*8192}
    s_add_u32 m0, m0, {18*32}
    s_nop 0
    buffer_load_dwordx4 v9, {sWQ}, {T0} offen{NTW} lds
    s_mul_i32 {T0}, {WAVE}, 288
    s_add_u32 m0, {T0}, {XIMG}
    s_mov_b32 exec_lo, 0x3ffff
    s_mov_b32 exec_hi, 0
    buffer_load_dwordx4 v4, {sX}, {T0} offen lds
    s_mov_b64 exec, -1
    """)
    srd(sK, "s6", "s7", 0x8000000)
    srd(sV, "s8", "s9", 0x8000000)
    VREG = 10
    def stream_load(n):
        m = n & 7
        g(f"""
        s_add_u32 {T0}, {ROT}, {m}
        s_and_b32 {T0}, {T0}, 7
        s_lshl_b32 {T0}, {T0}, 10
        s_add_u32 {T0}, {T0}, {KVB}
        """)
        if n < 8:
            g(f"""
            s_lshl_b32 {T1}, {WAVE}, 13
            s_add_u32 m0, {T1}, {KIMG + m*1024}
            s_nop 0
            buffer_load_dwordx4 v{5 + (m & 3)}, {sK}, {T0} offen{NT} lds
            """)
        else:
            r = VREG + 4*m
            g(f"buffer_load_dwordx4 v[{r}:{r+3}], v4, {sV}, {T0} offen{NT}")
    g(f"s_cmp_eq_u32 {WAVE}, 0")
    g("s_cbranch_scc1 L_w0_front")
    for n in range(depth):
        stream_load(n)
    srd(sWO, "s12", "s13", 4096*1152)
    srd(sOUT, "s14", "s15", 4608)
    g(f"""
    s_cmp_eq_u32 {WAVE}, 1
    s_cbranch_scc0 L_noinit
    v_mov_b32 v110, 0xff800000
    v_mov_b32 v111, 0xff800000
    v_mov_b32 v112, 0
    v_mov_b32 v113, 0
    v_mov_b32 v1, {ML}
    ds_write_b128 v1, v[110:113]
    s_waitcnt lgkmcnt(0)
    """)
    g.lab("L_noinit")
    g(f"s_waitcnt vmcnt({depth})")
    stamp(1)
    g("s_barrier")
    for n in range(depth, 16):
        g(f"s_waitcnt vmcnt({depth-1})")
        stream_load(n)
    stamp(2)
    g("s_branch L_bar2")
    g.lab("L_w0_front")
    g("v_mov_b32 v1, 0")
    g(f"global_load_dword v126, v1, {WSB}")
    for n in range(16):
        stream_load(n)
    srd(sWO, "s12", "s13", 4096*1152)
    srd(sOUT, "s14", "s15", 4608)
    if warm_out:
        g(f"buffer_load_dword v125, v4, {sOUT}, 0 offen")
        g("s_waitcnt vmcnt(17)")
    else:
        g("s_waitcnt vmcnt(16)")
    stamp(1)
    g("s_barrier")
    g(f"""
    v_readfirstlane_b32 {TAG}, v126
    s_mul_i32 {TAG}, {TAG}, 1664525
    s_add_u32 {TAG}, {TAG}, 1013904223
    """)
    g(f"""
    v_and_b32 v1, 3, v0
    v_mul_u32_u24 v1, 1152, v1
    v_lshl_add_u32 v42, v3, 4, v1
    v_add_u32 v42, {XIMG}, v42
    v_lshrrev_b32 v1, 2, v2
    v_lshlrev_b32 v1, 5, v1
    v_lshl_add_u32 v1, v3, 8, v1
    v_and_b32 v43, 3, v0
    v_lshl_add_u32 v43, v43, 3, v1
    v_add_u32 v43, {W}, v43
    v_mov_b32 v44, 0
    v_mov_b32 v45, 0
    v_mov_b32 v46, 0
    v_mov_b32 v47, 0
    """)
    def qreads(grp):
        base = 48 + (grp % 3)*16
        for st in range(2):
            kk = grp*2 + st
            r = base + st*8
            g(f"ds_read_b128 v[{r}:{r+3}], v42 offset:{kk*64}")
            g(f"ds_read_b64_tr_b16 v[{r+4}:{r+5}], v43 offset:{kk*1024}")
            g(f"ds_read_b64_tr_b16 v[{r+6}:{r+7}], v43 offset:{kk*1024+128}")
    qreads(0); qreads(1)
    for grp in range(9):
        if grp < 8:
            g("s_waitcnt lgkmcnt(6)")
        else:
            g("s_waitcnt lgkmcnt(0)")
        base = 48 + (grp % 3)*16
        for st in range(2):
            r = base + st*8
            g(f"v_mfma_f32_16x16x32_bf16 v[44:47], v[{r}:{r+3}], v[{r+4}:{r+7}], v[44:47]")
        if grp + 2 < 9:
            qreads(grp + 2)
    g(f"""
    s_mov_b32 s56, 0xffff0000
    s_mov_b32 s57, 0
    s_mov_b32 s58, 0
    s_mov_b32 s59, 0xffff
    s_mov_b32 s60, 0
    s_mov_b32 s61, 0xffff0000
    s_nop 4
    v_cndmask_b32 v48, v44, v45, s[56:57]
    v_cndmask_b32 v48, v48, v46, s[58:59]
    v_cndmask_b32 v48, v48, v47, s[60:61]
    s_nop 1
    v_mov_b32_dpp v49, v48 quad_perm:[1,0,3,2] row_mask:0xf bank_mask:0xf
    v_cvt_pk_bf16_f32 v50, v48, v49
    v_mov_b32 v51, {TAG}
    """)
    g(f"""
    s_lshl_b32 {T0}, {HKV}, 12
    s_lshl_b32 {T1}, {J}, 6
    s_add_u32 {T0}, {T0}, {T1}
    s_add_u32 {T0}, {T0}, {WS_Q}
    v_lshlrev_b32 v52, 10, v3
    v_lshrrev_b32 v1, 1, v2
    v_lshl_add_u32 v52, v1, 3, v52
    v_add_u32 v52, {T0}, v52
    s_mov_b32 exec_lo, 0x55555555
    s_mov_b32 exec_hi, 0x55555555
    global_store_dwordx2 v52, v[50:51], {WSB} sc1
    s_mov_b64 exec, -1
    """)
    stamp(2)
    g(f"""
    s_lshl_b32 {T0}, {HKV}, 12
    s_lshl_b32 {T1}, {B}, 10
    s_add_u32 {T0}, {T0}, {T1}
    s_add_u32 {T0}, {T0}, {WS_Q}
    v_add_u32 v52, {T0}, v4
    s_mov_b32 {T2}, 0
    """)
    g.lab("L_qpoll")
    g(f"""
    global_load_dwordx4 v[56:59], v52, {WSB} sc1
    s_add_u32 {T2}, {T2}, 1
    s_waitcnt vmcnt(0)
    v_cmp_eq_u32 vcc, {TAG}, v57
    v_cmp_eq_u32 s[56:57], {TAG}, v59
    s_nop 1
    s_and_b64 vcc, vcc, s[56:57]
    s_cmp_eq_u64 vcc, -1
    s_cbranch_scc1 L_qok
    s_cmp_lt_u32 {T2}, {spin}
    s_cbranch_scc1 L_qpoll
    """)
    g.lab("L_qok")
    g(f"""
    v_mov_b32 v57, v58
    v_lshlrev_b32 v1, 3, v0
    ds_write_b64 v1, v[56:57] offset:{QIMG}
    v_mov_b32 v1, 0
    v_mov_b32 v57, {TAG}
    ds_write_b32 v1, v57 offset:{ML+16}
    s_waitcnt lgkmcnt(0)
    """)
    stamp(3)
    g.lab("L_bar2")
    g("s_barrier")
    stamp(4)
    g(f"""
    v_mov_b32 v1, 0
    ds_read_b32 v126, v1 offset:{ML+16}
    """)
    g(f"""
    v_and_b32 v1, 1, v0
    v_lshlrev_b32 v1, 8, v1
    v_lshl_add_u32 v1, v3, 4, v1
    ds_read_b128 v[74:77], v1 offset:{QIMG}
    ds_read_b128 v[78:81], v1 offset:{QIMG+64}
    ds_read_b128 v[82:85], v1 offset:{QIMG+128}
    ds_read_b128 v[86:89], v1 offset:{QIMG+192}
    v_xor_b32 v1, v2, v3
    v_lshlrev_b32 v1, 4, v1
    v_lshl_add_u32 v1, v2, 8, v1
    s_lshl_b32 {T0}, {WAVE}, 13
    s_add_u32 {T0}, {T0}, {KIMG}
    v_add_u32 v110, {T0}, v1
    v_xor_b32 v111, 64, v110
    v_xor_b32 v112, 0x80, v110
    v_xor_b32 v113, 0xc0, v110
    """)
    for t in range(2):
        for j in range(4):
            r = 42 + (t*4 + j)*4
            g(f"ds_read_b128 v[{r}:{r+3}], v{110+j} offset:{t*4096}")
    g(f"""
    v_cmp_le_u32 vcc, 18, v0
    v_mov_b32 v1, 0
    v_mov_b32 v114, {1152 - 18*16}
    v_cndmask_b32 v1, v1, v114, vcc
    v_add_u32 v114, v1, v4
    s_lshl_b32 {T0}, {HKV}, 8
    s_lshl_b32 {T1}, {B}, 6
    s_add_u32 {T0}, {T0}, {T1}
    s_lshl_b32 {T1}, {WAVE}, 2
    s_add_u32 {T0}, {T0}, {T1}
    s_mul_i32 {T0}, {T0}, 1152
    s_mul_i32 {T1}, {S}, 288
    s_add_u32 {T0}, {T0}, {T1}
    s_mul_i32 {T1}, {WAVE}, {4*288}
    s_add_u32 m0, {T1}, {W}
    s_mov_b32 exec_lo, -1
    s_mov_b32 exec_hi, 0xf
    buffer_load_dwordx4 v114, {sWO}, {T0} offen{NTW} lds
    s_add_u32 {T0}, {T0}, {2*1152}
    s_add_u32 m0, m0, {2*288}
    s_nop 0
    buffer_load_dwordx4 v114, {sWO}, {T0} offen{NTW} lds
    s_mov_b64 exec, -1
    """)
    g("""
    v_mov_b32 v90, 0
    v_mov_b32 v91, 0
    v_mov_b32 v92, 0
    v_mov_b32 v93, 0
    v_mov_b32 v94, 0
    v_mov_b32 v95, 0
    v_mov_b32 v96, 0
    v_mov_b32 v97, 0
    s_waitcnt lgkmcnt(4)
    """)
    for j in range(4):
        g(f"v_mfma_f32_16x16x32_bf16 v[90:93], v[{74+4*j}:{77+4*j}], v[{42+4*j}:{45+4*j}], v[90:93]")
    g("s_waitcnt lgkmcnt(0)")
    for j in range(4):
        g(f"v_mfma_f32_16x16x32_bf16 v[94:97], v[{74+4*j}:{77+4*j}], v[{58+4*j}:{61+4*j}], v[94:97]")
    g(f"v_readfirstlane_b32 {TAG}, v126")
    g("""
    v_and_b32 v1, 1, v0
    v_cmp_eq_u32 vcc, 1, v1
    v_mov_b32 v110, 0x0c0c0100
    v_mov_b32 v111, 0x01000c0c
    v_mov_b32 v112, 0x0c0c0302
    v_mov_b32 v113, 0x03020c0c
    v_cndmask_b32 v110, v110, v111, vcc
    v_cndmask_b32 v112, v112, v113, vcc
    v_mov_b32 v111, 0x0c0c0c0c
    v_bfe_u32 v1, v0, 1, 2
    """)
    for r in range(4):
        g(f"v_cmp_eq_u32 vcc, {r}, v1")
        g("s_nop 1")
        g(f"v_cndmask_b32 v{102+r}, v111, v110, vcc")
        g(f"v_cndmask_b32 v{106+r}, v111, v112, vcc")
    g("""
    s_mov_b32 s56, 0xffff0000
    s_mov_b32 s57, 0xffff0000
    s_mov_b32 s58, 0
    s_mov_b32 s59, -1
    v_cndmask_b32 v110, v90, v94, s[56:57]
    v_cndmask_b32 v111, v91, v95, s[56:57]
    v_cndmask_b32 v110, v110, v111, s[58:59]
    """)
    if mimic:
        g(f"""
        v_cvt_pk_bf16_f32 v110, v110, v110
        v_lshlrev_b32 v110, 16, v110
        v_mul_f32 v110, 0x{f2u(0.08838834764831845):08x}, v110
        v_cvt_pk_bf16_f32 v110, v110, v110
        v_lshlrev_b32 v110, 16, v110
        """)
        CS = 1.4426950408889634
    else:
        CS = SCALE_LOG2E
    g("""
    s_nop 1
    v_max_f32_dpp v111, v110, v110 row_ror:8 row_mask:0xf bank_mask:0xf
    s_nop 1
    v_max_f32_dpp v111, v111, v111 row_ror:4 row_mask:0xf bank_mask:0xf
    s_nop 1
    v_max_f32_dpp v111, v111, v111 row_ror:2 row_mask:0xf bank_mask:0xf
    s_nop 1
    v_max_f32_dpp v111, v111, v111 row_ror:1 row_mask:0xf bank_mask:0xf
    s_nop 0
    v_mov_b32 v112, v111
    s_nop 1
    v_permlane16_swap_b32 v111, v112
    s_nop 1
    v_max_f32 v111, v111, v112
    """)
    g(f"""
    v_lshrrev_b32 v1, 5, v0
    v_lshlrev_b32 v113, 2, v1
    s_mov_b32 exec_lo, 1
    s_mov_b32 exec_hi, 1
    ds_max_f32 v113, v111 offset:{ML}
    s_mov_b64 exec, -1
    s_waitcnt lgkmcnt(0)
    s_barrier
    ds_read_b32 v112, v113 offset:{ML}
    s_mov_b32 {T0}, 0x{f2u(CS):08x}
    """)
    g(f"""
    v_and_b32 v114, 3, v0
    v_lshlrev_b32 v114, 4, v114
    v_bfe_u32 v115, v0, 2, 3
    v_lshl_add_u32 v114, v115, 1, v114
    v_lshl_add_u32 v114, v1, 6, v114
    s_lshl_b32 {T1}, {WAVE}, 7
    s_add_u32 {T1}, {T1}, {PIMG}
    v_add_u32 v114, {T1}, v114
    v_lshrrev_b32 v115, 3, v2
    v_lshlrev_b32 v115, 6, v115
    v_lshl_add_u32 v115, v3, 4, v115
    v_add_u32 v115, {T1}, v115
    s_waitcnt lgkmcnt(0)
    v_mul_f32 v112, {T0}, v112
    v_fma_f32 v110, v110, {T0}, -v112
    v_exp_f32 v110, v110
    s_nop 0
    v_cvt_pk_bf16_f32 v111, v110, v110
    ds_write_b16 v114, v111
    """)
    g(f"""
    v_lshlrev_b32 v110, 16, v111
    s_nop 1
    v_add_f32_dpp v110, v110, v110 row_ror:8 row_mask:0xf bank_mask:0xf
    s_nop 1
    v_add_f32_dpp v110, v110, v110 row_ror:4 row_mask:0xf bank_mask:0xf
    s_nop 1
    v_add_f32_dpp v110, v110, v110 row_ror:2 row_mask:0xf bank_mask:0xf
    s_nop 1
    v_add_f32_dpp v110, v110, v110 row_ror:1 row_mask:0xf bank_mask:0xf
    s_nop 0
    v_mov_b32 v116, v110
    s_nop 1
    v_permlane16_swap_b32 v110, v116
    s_nop 1
    v_add_f32 v110, v110, v116
    s_waitcnt lgkmcnt(0)
    ds_read_b128 v[116:119], v115
    s_mov_b32 exec_lo, 1
    s_mov_b32 exec_hi, 1
    ds_add_f32 v113, v110 offset:{ML+8}
    s_mov_b64 exec, -1
    v_mov_b32 v98, 0
    v_mov_b32 v99, 0
    v_mov_b32 v100, 0
    v_mov_b32 v101, 0
    s_waitcnt lgkmcnt(1)
    """)
    for n in range(8):
        src = 116 + (n >> 1)
        sel = 102 + (4 if (n & 1) else 0)
        for r in range(4):
            g(f"v_perm_b32 v{42+4*n+r}, v{src}, v{src}, v{sel+r}")
    stamp(5)
    g("s_nop 0")
    for n in range(8):
        g(f"s_waitcnt vmcnt({7-n+2})")
        g(f"v_mfma_f32_16x16x32_bf16 v[98:101], v[{42+4*n}:{45+4*n}], v[{VREG+4*n}:{VREG+4*n+3}], v[98:101]")
    stamp(6)
    g(f"""
    s_lshl_b32 {T0}, {WAVE}, 10
    v_add_u32 v1, {T0}, v4
    s_nop 5
    ds_write_b128 v1, v[98:101] offset:{PART}
    s_waitcnt lgkmcnt(0)
    s_barrier
    """)
    stamp(7)
    g(f"s_cmp_eq_u32 {WAVE}, 9")
    g("s_cbranch_scc0 L_gather1")
    for w in range(8):
        g(f"ds_read_b128 v[{42+4*w}:{45+4*w}], v4 offset:{PART + w*1024}")
    g(f"""
    v_lshrrev_b32 v1, 5, v0
    v_lshlrev_b32 v113, 2, v1
    ds_read_b32 v110, v113 offset:{ML}
    ds_read_b32 v111, v113 offset:{ML+8}
    """)
    g("s_waitcnt lgkmcnt(2)")
    for w in range(8, 15):
        g(f"ds_read_b128 v[{42+4*w}:{45+4*w}], v4 offset:{PART + w*1024}")
    for w in range(1, 8):
        g(f"v_pk_add_f32 v[42:43], v[42:43], v[{42+4*w}:{43+4*w}]")
        g(f"v_pk_add_f32 v[44:45], v[44:45], v[{44+4*w}:{45+4*w}]")
    g(f"ds_read_b128 v[46:49], v4 offset:{PART + 15*1024}")
    g(f"""
    s_lshl_b32 {T0}, {HKV}, 4
    s_add_u32 {T0}, {T0}, {J}
    s_lshl_b32 {T1}, {T0}, 11
    s_add_u32 {T1}, {T1}, {WS_O}
    v_lshlrev_b32 v114, 10, v1
    v_lshl_add_u32 v114, v2, 6, v114
    v_and_b32 v115, 1, v3
    v_lshl_add_u32 v114, v115, 5, v114
    v_add_u32 v114, {T1}, v114
    s_lshl_b32 {T1}, {T0}, 5
    s_add_u32 {T1}, {T1}, {WS_OS}
    v_lshlrev_b32 v115, 4, v1
    v_add_u32 v115, {T1}, v115
    s_mov_b32 {T2}, 0x{f2u(CS):08x}
    v_mov_b32 v117, {TAG}
    v_mov_b32 v119, {TAG}
    s_waitcnt lgkmcnt(1)
    v_mul_f32 v116, {T2}, v110
    v_mov_b32 v118, v111
    """)
    for w in range(8, 15):
        g(f"v_pk_add_f32 v[42:43], v[42:43], v[{42+4*w}:{43+4*w}]")
        g(f"v_pk_add_f32 v[44:45], v[44:45], v[{44+4*w}:{45+4*w}]")
    g(f"""
    s_waitcnt lgkmcnt(0)
    v_pk_add_f32 v[42:43], v[42:43], v[46:47]
    v_pk_add_f32 v[44:45], v[44:45], v[48:49]
    v_mov_b32 v51, {TAG}
    v_mov_b32 v53, {TAG}
    v_mov_b32 v55, {TAG}
    v_mov_b32 v57, {TAG}
    v_mov_b32 v50, v42
    v_mov_b32 v52, v43
    v_mov_b32 v54, v44
    v_mov_b32 v56, v45
    global_store_dwordx4 v114, v[50:53], {WSB} sc1
    global_store_dwordx4 v114, v[54:57], {WSB} offset:16 sc1
    s_mov_b32 exec_lo, 1
    s_mov_b32 exec_hi, 1
    global_store_dwordx4 v115, v[116:119], {WSB} sc1
    s_mov_b64 exec, -1
    """)
    stamp(8)
    g.lab("L_gather1")
    g(f"""
    s_lshl_b32 {T0}, {HKV}, 4
    s_add_u32 {T0}, {T0}, {WAVE}
    s_lshl_b32 {T1}, {T0}, 11
    s_lshl_b32 {T2}, {B}, 9
    s_add_u32 {T1}, {T1}, {T2}
    s_add_u32 {T1}, {T1}, {WS_O}
    v_lshlrev_b32 v110, 3, v0
    v_add_u32 v110, {T1}, v110
    s_lshl_b32 {T0}, {T0}, 5
    s_lshr_b32 {T2}, {B}, 1
    s_lshl_b32 {T2}, {T2}, 4
    s_add_u32 {T0}, {T0}, {T2}
    s_add_u32 {T0}, {T0}, {WS_OS}
    v_mov_b32 v111, {T0}
    s_mov_b32 {T2}, 0
    """)
    g.lab("L_opoll")
    g(f"""
    global_load_dwordx2 v[42:43], v110, {WSB} sc1
    global_load_dwordx4 v[44:47], v111, {WSB} sc1
    s_add_u32 {T2}, {T2}, 1
    s_waitcnt vmcnt(0)
    v_cmp_eq_u32 vcc, {TAG}, v43
    v_cmp_eq_u32 s[56:57], {TAG}, v45
    v_cmp_eq_u32 s[58:59], {TAG}, v47
    s_nop 1
    s_and_b64 vcc, vcc, s[56:57]
    s_and_b64 vcc, vcc, s[58:59]
    s_cmp_eq_u64 vcc, -1
    s_cbranch_scc1 L_ook
    s_cmp_lt_u32 {T2}, {spin}
    s_cbranch_scc1 L_opoll
    """)
    g.lab("L_ook")
    g(f"""
    v_cvt_pk_bf16_f32 v42, v42, v42
    s_mul_i32 {T0}, {WAVE}, 144
    v_lshlrev_b32 v1, 1, v0
    v_add_u32 v1, {T0}, v1
    ds_write_b16 v1, v42 offset:{AIMG}
    v_mov_b32 v45, v46
    s_lshl_b32 {T0}, {WAVE}, 3
    v_mov_b32 v1, {T0}
    s_mov_b64 exec, 1
    ds_write_b64 v1, v[44:45] offset:{STATS}
    s_mov_b64 exec, -1
    s_waitcnt lgkmcnt(0)
    s_barrier
    """)
    stamp(9)
    g(f"s_cmp_lt_u32 {WAVE}, 9")
    g("s_cbranch_scc0 L_notproj")
    g(f"""
    v_mul_u32_u24 v1, 144, v2
    v_lshl_add_u32 v1, v3, 4, v1
    ds_read_b128 v[42:45], v1 offset:{AIMG}
    ds_read_b128 v[46:49], v1 offset:{AIMG+64}
    v_lshrrev_b32 v110, 2, v2
    v_lshl_add_u32 v110, v3, 3, v110
    v_mul_u32_u24 v110, 288, v110
    v_and_b32 v111, 3, v0
    v_lshl_add_u32 v110, v111, 3, v110
    s_lshl_b32 {T0}, {WAVE}, 5
    s_add_u32 {T0}, {T0}, {W}
    v_add_u32 v110, {T0}, v110
    ds_read_b64_tr_b16 v[50:51], v110
    ds_read_b64_tr_b16 v[52:53], v110 offset:{4*288}
    ds_read_b64_tr_b16 v[54:55], v110 offset:{32*288}
    ds_read_b64_tr_b16 v[56:57], v110 offset:{36*288}
    v_lshlrev_b32 v111, 5, v3
    v_mov_b32 v66, 0
    v_mov_b32 v67, 0
    v_mov_b32 v68, 0
    v_mov_b32 v69, 0
    ds_read_b128 v[58:61], v111 offset:{STATS}
    ds_read_b128 v[62:65], v111 offset:{STATS+16}
    s_waitcnt lgkmcnt(2)
    v_mfma_f32_16x16x32_bf16 v[66:69], v[42:45], v[50:53], v[66:69]
    v_mfma_f32_16x16x32_bf16 v[66:69], v[46:49], v[54:57], v[66:69]
    s_waitcnt lgkmcnt(0)
    v_max3_f32 v70, v58, v60, v62
    v_max_f32 v70, v70, v64
    v_sub_f32 v58, v58, v70
    v_sub_f32 v60, v60, v70
    v_sub_f32 v62, v62, v70
    v_sub_f32 v64, v64, v70
    v_exp_f32 v58, v58
    v_exp_f32 v60, v60
    v_exp_f32 v62, v62
    v_exp_f32 v64, v64
    s_nop 0
    v_mul_f32 v71, v58, v59
    v_fmac_f32 v71, v60, v61
    v_fmac_f32 v71, v62, v63
    v_fmac_f32 v71, v64, v65
    v_rcp_f32 v71, v71
    v_mul_f32 v72, v58, v66
    v_fmac_f32 v72, v60, v67
    v_fmac_f32 v72, v62, v68
    v_fmac_f32 v72, v64, v69
    v_mul_f32 v72, v72, v71
    v_mov_b32 v73, {TAG}
    """)
    g(f"""
    s_mul_i32 {T0}, {S}, {4*9*8192}
    s_lshl_b32 {T1}, {WAVE}, 13
    s_add_u32 {T0}, {T0}, {T1}
    s_lshl_b32 {T1}, {HKV}, 2
    s_add_u32 {T1}, {T1}, {B}
    s_lshl_b32 {T1}, {T1}, 7
    s_add_u32 {T0}, {T0}, {T1}
    s_add_u32 {T0}, {T0}, {WS_P}
    v_mul_u32_u24 v1, {9*8192}, v3
    v_lshl_add_u32 v1, v2, 3, v1
    v_add_u32 v1, {T0}, v1
    global_store_dwordx2 v1, v[72:73], {WSB} sc1
    """)
    stamp(10)
    g("s_branch L_fin")
    g.lab("L_notproj")
    g(f"""
    s_cmp_eq_u32 {WAVE}, 15
    s_cbranch_scc0 L_fin
    s_cmp_lt_u32 s2, 144
    s_cbranch_scc0 L_fin
    s_and_b32 {T0}, s2, 3
    s_bfe_u32 {T1}, s2, 0x20002
    s_lshr_b32 {T2}, s2, 4
    s_lshl_b32 {T3}, {T0}, 2
    s_add_u32 {T3}, {T3}, {T1}
    s_mul_i32 {T3}, {T3}, 9
    s_add_u32 {T3}, {T3}, {T2}
    s_lshl_b32 {T3}, {T3}, 13
    s_add_u32 {T3}, {T3}, {WS_P}
    v_add_u32 v110, {T3}, v4
    s_mul_i32 {T1}, {T1}, 1152
    s_mul_i32 {T0}, {T0}, 288
    s_add_u32 {T1}, {T1}, {T0}
    s_lshl_b32 {T2}, {T2}, 5
    s_add_u32 {T1}, {T1}, {T2}
    v_lshlrev_b32 v111, 2, v0
    v_add_u32 v111, {T1}, v111
    s_mov_b32 {T2}, 0
    """)
    g.lab("L_ppoll")
    for n in range(8):
        g(f"global_load_dwordx4 v[{42+4*n}:{45+4*n}], v110, {WSB} offset:{n*1024 if n < 4 else 0} sc1" if n < 4 else
          f"global_load_dwordx4 v[{42+4*n}:{45+4*n}], v112, {WSB} offset:{(n-4)*1024} sc1")
        if n == 0:
            g("v_add_u32 v112, 4096, v110")
    g(f"""
    s_add_u32 {T2}, {T2}, 1
    s_mov_b64 s[56:57], -1
    """)
    for n in range(8):
        g(f"s_waitcnt vmcnt({7-n})")
        g(f"v_cmp_eq_u32 vcc, {TAG}, v{43+4*n}")
        g(f"v_cmp_eq_u32 s[58:59], {TAG}, v{45+4*n}")
        g("s_nop 1")
        g("s_and_b64 s[56:57], s[56:57], vcc")
        g("s_and_b64 s[56:57], s[56:57], s[58:59]")
    g(f"""
    s_cmp_eq_u64 s[56:57], -1
    s_cbranch_scc1 L_pok
    s_cmp_lt_u32 {T2}, {spin}
    s_cbranch_scc1 L_ppoll
    """)
    g.lab("L_pok")
    for n in range(1, 8):
        g(f"v_add_f32 v42, v42, v{42+4*n}")
        g(f"v_add_f32 v44, v44, v{44+4*n}")
    g("""
    s_nop 1
    v_add_f32_dpp v42, v42, v42 row_ror:8 row_mask:0xf bank_mask:0xf
    v_add_f32_dpp v44, v44, v44 row_ror:8 row_mask:0xf bank_mask:0xf
    s_nop 0
    v_mov_b32 v43, v42
    v_mov_b32 v45, v44
    s_nop 1
    v_permlane16_swap_b32 v42, v43
    v_permlane16_swap_b32 v44, v45
    s_nop 1
    v_add_f32 v42, v42, v43
    v_add_f32 v44, v44, v45
    s_nop 0
    v_mov_b32 v43, v42
    v_mov_b32 v45, v44
    s_nop 1
    v_permlane32_swap_b32 v42, v43
    v_permlane32_swap_b32 v44, v45
    s_nop 1
    v_add_f32 v42, v42, v43
    v_add_f32 v44, v44, v45
    s_nop 0
    v_cvt_pk_bf16_f32 v42, v42, v44
    s_mov_b64 exec, 0xff
    """)
    g(f"buffer_store_dword v42, v111, {sOUT}, 0 offen")
    g("s_mov_b64 exec, -1")
    g(f"""
    s_cmp_eq_u32 s2, 0
    s_cbranch_scc0 L_fin
    v_mov_b32 v1, 0
    v_mov_b32 v43, {TAG}
    s_mov_b64 exec, 1
    global_store_dword v1, v43, {WSB} sc1
    s_mov_b64 exec, -1
    """)
    g.lab("L_fin")
    if ts:
        g("s_memrealtime s[90:91]")
        g("s_waitcnt lgkmcnt(0)")
    if dbgts:
        g(f"s_cmp_eq_u32 {WAVE}, 0")
        g("s_cbranch_scc1 L_dbg")
        g(f"s_cmp_eq_u32 {WAVE}, 9")
        g("s_cbranch_scc1 L_dbg")
        g(f"s_cmp_eq_u32 {WAVE}, 15")
        g("s_cbranch_scc0 L_end")
        g.lab("L_dbg")
        for _ in range(8):
            g("s_sleep 127")
        g("s_mov_b64 exec, 1")
        g("v_mov_b32 v1, 0")
        g("s_not_b32 s92, s64")
        g("v_mov_b32 v2, s92")
        g("global_atomic_umax v1, v2, s[16:17]")
        for k in range(1, 11):
            g(f"v_mov_b32 v2, s{64+2*k}")
            g(f"global_atomic_umax v1, v2, s[16:17] offset:{4*k}")
        g("v_mov_b32 v2, s90")
        g("global_atomic_umax v1, v2, s[16:17] offset:44")
        g("v_mov_b32 v2, s64")
        g("global_atomic_umax v1, v2, s[16:17] offset:48")
    elif ts:
        pass
    if ts and not dbgts:
        g(f"""
        s_lshl_b32 {T0}, s2, 4
        s_add_u32 {T0}, {T0}, {WAVE}
        s_lshl_b32 {T0}, {T0}, 7
        s_add_u32 {T0}, {T0}, {WS_TS}
        v_mov_b32 v1, {T0}
        s_mov_b64 exec, 1
        """)
        for k in range(13):
            g(f"v_mov_b32 v2, s{64+2*k}")
            g(f"global_store_dword v1, v2, {WSB} offset:{4*k}")
        g("v_mov_b32 v2, s90")
        g(f"global_store_dword v1, v2, {WSB} offset:60")
    g.lab("L_end")
    g("s_endpgm")
    tail = f"""
.section .rodata,"a"
.p2align 6
.amdhsa_kernel {NAME}
  .amdhsa_next_free_vgpr 128
  .amdhsa_next_free_sgpr 96
  .amdhsa_accum_offset 128
  .amdhsa_group_segment_fixed_size 0
  .amdhsa_kernarg_size 64
  .amdhsa_user_sgpr_count 2
  .amdhsa_user_sgpr_kernarg_segment_ptr 1
  .amdhsa_system_sgpr_workgroup_id_x 1
.end_amdhsa_kernel
"""
    return "\n".join(hdr) + "\n" + "\n".join(g.L) + tail

if __name__ == "__main__":
    import argparse
    ap = argparse.ArgumentParser()
    ap.add_argument("-o", default="k.s")
    ap.add_argument("--depth", type=int, default=3)
    ap.add_argument("--ts", action="store_true")
    ap.add_argument("--mimic", action="store_true")
    ap.add_argument("--spin", type=int, default=200000)
    ap.add_argument("--defw", action="store_true")
    ap.add_argument("--dbgts", action="store_true")
    a = ap.parse_args()
    open(a.o, "w").write(gen(depth=a.depth, ts=a.ts, mimic=a.mimic, spin=a.spin, nt_w=not a.defw, dbgts=a.dbgts))
```

```python
import sys
NAME = "standalone__sliding_block_cached__decode_kernel"

ML    = 0
STATS = 64
QIMG  = 256
PIMG  = 768
AIMG  = 2816
XIMG  = 5120
W     = 9728
KIMG  = 28160
PART  = KIMG
LDS_BYTES = KIMG + 131072
WS_EPOCH = 0
WS_Q  = 4096
WS_OS = 69632
WS_O  = 131072
WS_P  = 786432
WS_TS = 4*1024*1024

SCALE_LOG2E = 0.08838834764831845 * 1.4426950408889634

def f2u(x):
    import struct
    return struct.unpack("<I", struct.pack("<f", x))[0]

class G:
    def __init__(s):
        s.L = []
    def __call__(s, t):
        for line in t.strip().split("\n"):
            s.L.append("    " + line.strip())
    def lab(s, t):
        s.L.append(t + ":")
    def c(s, t):
        s.L.append("    ; " + t)

def gen(depth=3, spin=200000, ts=False, mimic=False, nt_w=True, warm_out=True, dbgts=False, fixed=0):
    ts = ts or dbgts
    g = G()
    hdr = []
    hdr.append(f"; @launch grid=(256,1,1) block=(1024,1,1) lds={LDS_BYTES}")
    hdr.append('.amdgcn_target "amdgcn-amd-amdhsa--gfx950"')
    hdr.append(".text")
    hdr.append(f".globl {NAME}")
    hdr.append(".p2align 8")
    hdr.append(f".type {NAME},@function")
    hdr.append(f"{NAME}:")
    NT = " nt"
    NTW = " nt" if nt_w else ""
    sK, sV, sWQ, sWO, sX, sOUT = "s[20:23]", "s[24:27]", "s[28:31]", "s[32:35]", "s[36:39]", "s[40:43]"
    WSB = "s[18:19]"
    HKV, J, B, S = "s44", "s45", "s46", "s47"
    KVB, ROT, TAG = "s48", "s49", "s50"
    T0, T1, T2, T3 = "s51", "s52", "s53", "s54"
    WAVE = "s3"
    def stamp(k):
        if ts:
            g(f"s_memrealtime s[{64+2*k}:{65+2*k}]")
    g("s_cmp_ge_u32 s2, 256")
    g("s_cbranch_scc1 L_end")
    if ts:
        for k in range(1, 13):
            g(f"s_mov_b32 s{64+2*k}, 0")
    stamp(0)
    if fixed:
        g("s_memrealtime s[94:95]")
    g("s_load_dwordx16 s[4:19], s[0:1], 0")
    g(f"""
    v_lshrrev_b32 v1, 6, v0
    v_and_b32 v0, 63, v0
    v_readfirstlane_b32 {WAVE}, v1
    s_and_b32 {HKV}, s2, 15
    s_lshr_b32 {J}, s2, 4
    s_lshr_b32 {B}, {J}, 2
    s_and_b32 {S}, {J}, 3
    """)
    g(f"""
    s_lshl_b32 {T0}, {B}, 4
    s_add_u32 {T0}, {T0}, {HKV}
    s_lshl_b32 {KVB}, {T0}, 21
    s_lshl_b32 {T0}, {S}, 17
    s_add_u32 {KVB}, {KVB}, {T0}
    s_add_u32 {KVB}, {KVB}, 0x180000
    s_lshl_b32 {T0}, {WAVE}, 13
    s_add_u32 {KVB}, {KVB}, {T0}
    s_lshr_b32 {ROT}, s2, 3
    s_add_u32 {ROT}, {ROT}, {WAVE}
    """)
    g("""
    v_and_b32 v2, 15, v0
    v_lshrrev_b32 v3, 4, v0
    v_lshlrev_b32 v4, 4, v0
    """)
    g("""
    v_xor_b32 v1, v2, v3
    v_lshlrev_b32 v1, 4, v1
    v_lshl_add_u32 v5, v3, 8, v1
    v_xor_b32 v6, 64, v5
    v_xor_b32 v7, 0x80, v5
    v_xor_b32 v8, 0xc0, v5
    """)
    g("""
    v_lshrrev_b32 v1, 1, v0
    v_lshlrev_b32 v1, 13, v1
    v_and_b32 v9, 1, v0
    v_lshl_add_u32 v9, v9, 4, v1
    """)
    g("s_waitcnt lgkmcnt(0)")
    def srd(dst, lo, hi, size):
        a = int(dst[2:dst.index(":")])
        g(f"""
        s_mov_b32 s{a}, {lo}
        s_and_b32 s{a+1}, {hi}, 0xffff
        s_mov_b32 s{a+2}, {size}
        s_mov_b32 s{a+3}, 0x20000
        """)
    srd(sWQ, "s10", "s11", 576*8192)
    srd(sX, "s4", "s5", 4608)
    g(f"""
    s_mul_i32 {T0}, {WAVE}, {36*8192}
    s_lshl_b32 {T1}, {HKV}, 9
    s_add_u32 {T0}, {T0}, {T1}
    s_lshl_b32 {T1}, {J}, 5
    s_add_u32 {T0}, {T0}, {T1}
    s_mul_i32 {T1}, {WAVE}, {36*32}
    s_add_u32 m0, {T1}, {W}
    s_mov_b32 exec_lo, -1
    s_mov_b32 exec_hi, 0xf
    buffer_load_dwordx4 v9, {sWQ}, {T0} offen{NTW} lds
    s_add_u32 {T0}, {T0}, {18*8192}
    s_add_u32 m0, m0, {18*32}
    s_nop 0
    buffer_load_dwordx4 v9, {sWQ}, {T0} offen{NTW} lds
    s_mul_i32 {T0}, {WAVE}, 288
    s_add_u32 m0, {T0}, {XIMG}
    s_mov_b32 exec_lo, 0x3ffff
    s_mov_b32 exec_hi, 0
    buffer_load_dwordx4 v4, {sX}, {T0} offen lds
    s_mov_b64 exec, -1
    """)
    srd(sK, "s6", "s7", 0x8000000)
    srd(sV, "s8", "s9", 0x8000000)
    VREG = 10
    def stream_load(n):
        m = n & 7
        g(f"""
        s_add_u32 {T0}, {ROT}, {m}
        s_and_b32 {T0}, {T0}, 7
        s_lshl_b32 {T0}, {T0}, 10
        s_add_u32 {T0}, {T0}, {KVB}
        """)
        if n < 8:
            g(f"""
            s_lshl_b32 {T1}, {WAVE}, 13
            s_add_u32 m0, {T1}, {KIMG + m*1024}
            s_nop 0
            buffer_load_dwordx4 v{5 + (m & 3)}, {sK}, {T0} offen{NT} lds
            """)
        else:
            r = VREG + 4*m
            g(f"buffer_load_dwordx4 v[{r}:{r+3}], v4, {sV}, {T0} offen{NT}")
    g(f"s_cmp_eq_u32 {WAVE}, 0")
    g("s_cbranch_scc1 L_w0_front")
    for n in range(depth):
        stream_load(n)
    srd(sWO, "s12", "s13", 4096*1152)
    srd(sOUT, "s14", "s15", 4608)
    g(f"""
    s_cmp_eq_u32 {WAVE}, 1
    s_cbranch_scc0 L_noinit
    v_mov_b32 v110, 0xff800000
    v_mov_b32 v111, 0xff800000
    v_mov_b32 v112, 0
    v_mov_b32 v113, 0
    v_mov_b32 v1, {ML}
    ds_write_b128 v1, v[110:113]
    s_waitcnt lgkmcnt(0)
    """)
    g.lab("L_noinit")
    g(f"s_waitcnt vmcnt({depth})")
    stamp(1)
    g("s_barrier")
    for n in range(depth, 16):
        g(f"s_waitcnt vmcnt({depth-1})")
        stream_load(n)
    stamp(2)
    g("s_branch L_bar2")
    g.lab("L_w0_front")
    g("v_mov_b32 v1, 0")
    g(f"global_load_dword v126, v1, {WSB}")
    for n in range(16):
        stream_load(n)
    srd(sWO, "s12", "s13", 4096*1152)
    srd(sOUT, "s14", "s15", 4608)
    if warm_out:
        g(f"buffer_load_dword v125, v4, {sOUT}, 0 offen")
        g("s_waitcnt vmcnt(17)")
    else:
        g("s_waitcnt vmcnt(16)")
    stamp(1)
    g("s_barrier")
    g(f"""
    v_readfirstlane_b32 {TAG}, v126
    s_mul_i32 {TAG}, {TAG}, 1664525
    s_add_u32 {TAG}, {TAG}, 1013904223
    """)
    g(f"""
    v_and_b32 v1, 3, v0
    v_mul_u32_u24 v1, 1152, v1
    v_lshl_add_u32 v42, v3, 4, v1
    v_add_u32 v42, {XIMG}, v42
    v_lshrrev_b32 v1, 2, v2
    v_lshlrev_b32 v1, 5, v1
    v_lshl_add_u32 v1, v3, 8, v1
    v_and_b32 v43, 3, v0
    v_lshl_add_u32 v43, v43, 3, v1
    v_add_u32 v43, {W}, v43
    v_mov_b32 v44, 0
    v_mov_b32 v45, 0
    v_mov_b32 v46, 0
    v_mov_b32 v47, 0
    """)
    def qreads(grp):
        base = 48 + (grp % 3)*16
        for st in range(2):
            kk = grp*2 + st
            r = base + st*8
            g(f"ds_read_b128 v[{r}:{r+3}], v42 offset:{kk*64}")
            g(f"ds_read_b64_tr_b16 v[{r+4}:{r+5}], v43 offset:{kk*1024}")
            g(f"ds_read_b64_tr_b16 v[{r+6}:{r+7}], v43 offset:{kk*1024+128}")
    qreads(0); qreads(1)
    for grp in range(9):
        if grp < 8:
            g("s_waitcnt lgkmcnt(6)")
        else:
            g("s_waitcnt lgkmcnt(0)")
        base = 48 + (grp % 3)*16
        for st in range(2):
            r = base + st*8
            g(f"v_mfma_f32_16x16x32_bf16 v[44:47], v[{r}:{r+3}], v[{r+4}:{r+7}], v[44:47]")
        if grp + 2 < 9:
            qreads(grp + 2)
    g(f"""
    s_mov_b32 s56, 0xffff0000
    s_mov_b32 s57, 0
    s_mov_b32 s58, 0
    s_mov_b32 s59, 0xffff
    s_mov_b32 s60, 0
    s_mov_b32 s61, 0xffff0000
    s_nop 4
    v_cndmask_b32 v48, v44, v45, s[56:57]
    v_cndmask_b32 v48, v48, v46, s[58:59]
    v_cndmask_b32 v48, v48, v47, s[60:61]
    s_nop 1
    v_mov_b32_dpp v49, v48 quad_perm:[1,0,3,2] row_mask:0xf bank_mask:0xf
    v_cvt_pk_bf16_f32 v50, v48, v49
    v_mov_b32 v51, {TAG}
    """)
    g(f"""
    s_lshl_b32 {T0}, {HKV}, 12
    s_lshl_b32 {T1}, {J}, 6
    s_add_u32 {T0}, {T0}, {T1}
    s_add_u32 {T0}, {T0}, {WS_Q}
    v_lshlrev_b32 v52, 10, v3
    v_lshrrev_b32 v1, 1, v2
    v_lshl_add_u32 v52, v1, 3, v52
    v_add_u32 v52, {T0}, v52
    s_mov_b32 exec_lo, 0x55555555
    s_mov_b32 exec_hi, 0x55555555
    global_store_dwordx2 v52, v[50:51], {WSB} sc1
    s_mov_b64 exec, -1
    """)
    stamp(2)
    g(f"""
    s_lshl_b32 {T0}, {HKV}, 12
    s_lshl_b32 {T1}, {B}, 10
    s_add_u32 {T0}, {T0}, {T1}
    s_add_u32 {T0}, {T0}, {WS_Q}
    v_add_u32 v52, {T0}, v4
    s_mov_b32 {T2}, 0
    """)
    g.lab("L_qpoll")
    g(f"""
    global_load_dwordx4 v[56:59], v52, {WSB} sc1
    s_add_u32 {T2}, {T2}, 1
    s_waitcnt vmcnt(0)
    v_cmp_eq_u32 vcc, {TAG}, v57
    v_cmp_eq_u32 s[56:57], {TAG}, v59
    s_nop 1
    s_and_b64 vcc, vcc, s[56:57]
    s_cmp_eq_u64 vcc, -1
    s_cbranch_scc1 L_qok
    s_cmp_lt_u32 {T2}, {spin}
    s_cbranch_scc1 L_qpoll
    """)
    g.lab("L_qok")
    g(f"""
    v_mov_b32 v57, v58
    v_lshlrev_b32 v1, 3, v0
    ds_write_b64 v1, v[56:57] offset:{QIMG}
    v_mov_b32 v1, 0
    v_mov_b32 v57, {TAG}
    ds_write_b32 v1, v57 offset:{ML+16}
    s_waitcnt lgkmcnt(0)
    """)
    stamp(3)
    g.lab("L_bar2")
    g("s_barrier")
    stamp(4)
    g(f"""
    v_mov_b32 v1, 0
    ds_read_b32 v126, v1 offset:{ML+16}
    """)
    g(f"""
    v_and_b32 v1, 1, v0
    v_lshlrev_b32 v1, 8, v1
    v_lshl_add_u32 v1, v3, 4, v1
    ds_read_b128 v[74:77], v1 offset:{QIMG}
    ds_read_b128 v[78:81], v1 offset:{QIMG+64}
    ds_read_b128 v[82:85], v1 offset:{QIMG+128}
    ds_read_b128 v[86:89], v1 offset:{QIMG+192}
    v_xor_b32 v1, v2, v3
    v_lshlrev_b32 v1, 4, v1
    v_lshl_add_u32 v1, v2, 8, v1
    s_lshl_b32 {T0}, {WAVE}, 13
    s_add_u32 {T0}, {T0}, {KIMG}
    v_add_u32 v110, {T0}, v1
    v_xor_b32 v111, 64, v110
    v_xor_b32 v112, 0x80, v110
    v_xor_b32 v113, 0xc0, v110
    """)
    for t in range(2):
        for j in range(4):
            r = 42 + (t*4 + j)*4
            g(f"ds_read_b128 v[{r}:{r+3}], v{110+j} offset:{t*4096}")
    g(f"""
    v_cmp_le_u32 vcc, 18, v0
    v_mov_b32 v1, 0
    v_mov_b32 v114, {1152 - 18*16}
    v_cndmask_b32 v1, v1, v114, vcc
    v_add_u32 v114, v1, v4
    s_lshl_b32 {T0}, {HKV}, 8
    s_lshl_b32 {T1}, {B}, 6
    s_add_u32 {T0}, {T0}, {T1}
    s_lshl_b32 {T1}, {WAVE}, 2
    s_add_u32 {T0}, {T0}, {T1}
    s_mul_i32 {T0}, {T0}, 1152
    s_mul_i32 {T1}, {S}, 288
    s_add_u32 {T0}, {T0}, {T1}
    s_mul_i32 {T1}, {WAVE}, {4*288}
    s_add_u32 m0, {T1}, {W}
    s_mov_b32 exec_lo, -1
    s_mov_b32 exec_hi, 0xf
    buffer_load_dwordx4 v114, {sWO}, {T0} offen{NTW} lds
    s_add_u32 {T0}, {T0}, {2*1152}
    s_add_u32 m0, m0, {2*288}
    s_nop 0
    buffer_load_dwordx4 v114, {sWO}, {T0} offen{NTW} lds
    s_mov_b64 exec, -1
    """)
    g("""
    v_mov_b32 v90, 0
    v_mov_b32 v91, 0
    v_mov_b32 v92, 0
    v_mov_b32 v93, 0
    v_mov_b32 v94, 0
    v_mov_b32 v95, 0
    v_mov_b32 v96, 0
    v_mov_b32 v97, 0
    s_waitcnt lgkmcnt(4)
    """)
    for j in range(4):
        g(f"v_mfma_f32_16x16x32_bf16 v[90:93], v[{74+4*j}:{77+4*j}], v[{42+4*j}:{45+4*j}], v[90:93]")
    g("s_waitcnt lgkmcnt(0)")
    for j in range(4):
        g(f"v_mfma_f32_16x16x32_bf16 v[94:97], v[{74+4*j}:{77+4*j}], v[{58+4*j}:{61+4*j}], v[94:97]")
    g(f"v_readfirstlane_b32 {TAG}, v126")
    g("""
    v_and_b32 v1, 1, v0
    v_cmp_eq_u32 vcc, 1, v1
    v_mov_b32 v110, 0x0c0c0100
    v_mov_b32 v111, 0x01000c0c
    v_mov_b32 v112, 0x0c0c0302
    v_mov_b32 v113, 0x03020c0c
    v_cndmask_b32 v110, v110, v111, vcc
    v_cndmask_b32 v112, v112, v113, vcc
    v_mov_b32 v111, 0x0c0c0c0c
    v_bfe_u32 v1, v0, 1, 2
    """)
    for r in range(4):
        g(f"v_cmp_eq_u32 vcc, {r}, v1")
        g("s_nop 1")
        g(f"v_cndmask_b32 v{102+r}, v111, v110, vcc")
        g(f"v_cndmask_b32 v{106+r}, v111, v112, vcc")
    g("""
    s_mov_b32 s56, 0xffff0000
    s_mov_b32 s57, 0xffff0000
    s_mov_b32 s58, 0
    s_mov_b32 s59, -1
    v_cndmask_b32 v110, v90, v94, s[56:57]
    v_cndmask_b32 v111, v91, v95, s[56:57]
    v_cndmask_b32 v110, v110, v111, s[58:59]
    """)
    if mimic:
        g(f"""
        v_cvt_pk_bf16_f32 v110, v110, v110
        v_lshlrev_b32 v110, 16, v110
        v_mul_f32 v110, 0x{f2u(0.08838834764831845):08x}, v110
        v_cvt_pk_bf16_f32 v110, v110, v110
        v_lshlrev_b32 v110, 16, v110
        """)
        CS = 1.4426950408889634
    else:
        CS = SCALE_LOG2E
    g("""
    s_nop 1
    v_max_f32_dpp v111, v110, v110 row_ror:8 row_mask:0xf bank_mask:0xf
    s_nop 1
    v_max_f32_dpp v111, v111, v111 row_ror:4 row_mask:0xf bank_mask:0xf
    s_nop 1
    v_max_f32_dpp v111, v111, v111 row_ror:2 row_mask:0xf bank_mask:0xf
    s_nop 1
    v_max_f32_dpp v111, v111, v111 row_ror:1 row_mask:0xf bank_mask:0xf
    s_nop 0
    v_mov_b32 v112, v111
    s_nop 1
    v_permlane16_swap_b32 v111, v112
    s_nop 1
    v_max_f32 v111, v111, v112
    """)
    g(f"""
    v_lshrrev_b32 v1, 5, v0
    v_lshlrev_b32 v113, 2, v1
    s_mov_b32 exec_lo, 1
    s_mov_b32 exec_hi, 1
    ds_max_f32 v113, v111 offset:{ML}
    s_mov_b64 exec, -1
    s_waitcnt lgkmcnt(0)
    s_barrier
    ds_read_b32 v112, v113 offset:{ML}
    s_mov_b32 {T0}, 0x{f2u(CS):08x}
    """)
    g(f"""
    v_and_b32 v114, 3, v0
    v_lshlrev_b32 v114, 4, v114
    v_bfe_u32 v115, v0, 2, 3
    v_lshl_add_u32 v114, v115, 1, v114
    v_lshl_add_u32 v114, v1, 6, v114
    s_lshl_b32 {T1}, {WAVE}, 7
    s_add_u32 {T1}, {T1}, {PIMG}
    v_add_u32 v114, {T1}, v114
    v_lshrrev_b32 v115, 3, v2
    v_lshlrev_b32 v115, 6, v115
    v_lshl_add_u32 v115, v3, 4, v115
    v_add_u32 v115, {T1}, v115
    s_waitcnt lgkmcnt(0)
    v_mul_f32 v112, {T0}, v112
    v_fma_f32 v110, v110, {T0}, -v112
    v_exp_f32 v110, v110
    s_nop 0
    v_cvt_pk_bf16_f32 v111, v110, v110
    ds_write_b16 v114, v111
    """)
    g(f"""
    v_lshlrev_b32 v110, 16, v111
    s_nop 1
    v_add_f32_dpp v110, v110, v110 row_ror:8 row_mask:0xf bank_mask:0xf
    s_nop 1
    v_add_f32_dpp v110, v110, v110 row_ror:4 row_mask:0xf bank_mask:0xf
    s_nop 1
    v_add_f32_dpp v110, v110, v110 row_ror:2 row_mask:0xf bank_mask:0xf
    s_nop 1
    v_add_f32_dpp v110, v110, v110 row_ror:1 row_mask:0xf bank_mask:0xf
    s_nop 0
    v_mov_b32 v116, v110
    s_nop 1
    v_permlane16_swap_b32 v110, v116
    s_nop 1
    v_add_f32 v110, v110, v116
    s_waitcnt lgkmcnt(0)
    ds_read_b128 v[116:119], v115
    s_mov_b32 exec_lo, 1
    s_mov_b32 exec_hi, 1
    ds_add_f32 v113, v110 offset:{ML+8}
    s_mov_b64 exec, -1
    v_mov_b32 v98, 0
    v_mov_b32 v99, 0
    v_mov_b32 v100, 0
    v_mov_b32 v101, 0
    s_waitcnt lgkmcnt(1)
    """)
    for n in range(8):
        src = 116 + (n >> 1)
        sel = 102 + (4 if (n & 1) else 0)
        for r in range(4):
            g(f"v_perm_b32 v{42+4*n+r}, v{src}, v{src}, v{sel+r}")
    stamp(5)
    g("s_nop 0")
    for n in range(8):
        g(f"s_waitcnt vmcnt({7-n+2})")
        g(f"v_mfma_f32_16x16x32_bf16 v[98:101], v[{42+4*n}:{45+4*n}], v[{VREG+4*n}:{VREG+4*n+3}], v[98:101]")
    stamp(6)
    g(f"""
    s_lshl_b32 {T0}, {WAVE}, 10
    v_add_u32 v1, {T0}, v4
    s_nop 5
    ds_write_b128 v1, v[98:101] offset:{PART}
    s_waitcnt lgkmcnt(0)
    s_barrier
    """)
    stamp(7)
    g(f"s_cmp_eq_u32 {WAVE}, 9")
    g("s_cbranch_scc0 L_gather1")
    for w in range(8):
        g(f"ds_read_b128 v[{42+4*w}:{45+4*w}], v4 offset:{PART + w*1024}")
    g(f"""
    v_lshrrev_b32 v1, 5, v0
    v_lshlrev_b32 v113, 2, v1
    ds_read_b32 v110, v113 offset:{ML}
    ds_read_b32 v111, v113 offset:{ML+8}
    """)
    g("s_waitcnt lgkmcnt(2)")
    for w in range(8, 15):
        g(f"ds_read_b128 v[{42+4*w}:{45+4*w}], v4 offset:{PART + w*1024}")
    for w in range(1, 8):
        g(f"v_pk_add_f32 v[42:43], v[42:43], v[{42+4*w}:{43+4*w}]")
        g(f"v_pk_add_f32 v[44:45], v[44:45], v[{44+4*w}:{45+4*w}]")
    g(f"ds_read_b128 v[46:49], v4 offset:{PART + 15*1024}")
    g(f"""
    s_lshl_b32 {T0}, {HKV}, 4
    s_add_u32 {T0}, {T0}, {J}
    s_lshl_b32 {T1}, {T0}, 11
    s_add_u32 {T1}, {T1}, {WS_O}
    v_lshlrev_b32 v114, 10, v1
    v_lshl_add_u32 v114, v2, 6, v114
    v_and_b32 v115, 1, v3
    v_lshl_add_u32 v114, v115, 5, v114
    v_add_u32 v114, {T1}, v114
    s_lshl_b32 {T1}, {T0}, 5
    s_add_u32 {T1}, {T1}, {WS_OS}
    v_lshlrev_b32 v115, 4, v1
    v_add_u32 v115, {T1}, v115
    s_mov_b32 {T2}, 0x{f2u(CS):08x}
    v_mov_b32 v117, {TAG}
    v_mov_b32 v119, {TAG}
    s_waitcnt lgkmcnt(1)
    v_mul_f32 v116, {T2}, v110
    v_mov_b32 v118, v111
    """)
    for w in range(8, 15):
        g(f"v_pk_add_f32 v[42:43], v[42:43], v[{42+4*w}:{43+4*w}]")
        g(f"v_pk_add_f32 v[44:45], v[44:45], v[{44+4*w}:{45+4*w}]")
    g(f"""
    s_waitcnt lgkmcnt(0)
    v_pk_add_f32 v[42:43], v[42:43], v[46:47]
    v_pk_add_f32 v[44:45], v[44:45], v[48:49]
    v_mov_b32 v51, {TAG}
    v_mov_b32 v53, {TAG}
    v_mov_b32 v55, {TAG}
    v_mov_b32 v57, {TAG}
    v_mov_b32 v50, v42
    v_mov_b32 v52, v43
    v_mov_b32 v54, v44
    v_mov_b32 v56, v45
    global_store_dwordx4 v114, v[50:53], {WSB} sc1
    global_store_dwordx4 v114, v[54:57], {WSB} offset:16 sc1
    s_mov_b32 exec_lo, 1
    s_mov_b32 exec_hi, 1
    global_store_dwordx4 v115, v[116:119], {WSB} sc1
    s_mov_b64 exec, -1
    """)
    stamp(8)
    g.lab("L_gather1")
    g(f"""
    s_lshl_b32 {T0}, {HKV}, 4
    s_add_u32 {T0}, {T0}, {WAVE}
    s_lshl_b32 {T1}, {T0}, 11
    s_lshl_b32 {T2}, {B}, 9
    s_add_u32 {T1}, {T1}, {T2}
    s_add_u32 {T1}, {T1}, {WS_O}
    v_lshlrev_b32 v110, 3, v0
    v_add_u32 v110, {T1}, v110
    s_lshl_b32 {T0}, {T0}, 5
    s_lshr_b32 {T2}, {B}, 1
    s_lshl_b32 {T2}, {T2}, 4
    s_add_u32 {T0}, {T0}, {T2}
    s_add_u32 {T0}, {T0}, {WS_OS}
    v_mov_b32 v111, {T0}
    s_mov_b32 {T2}, 0
    """)
    g.lab("L_opoll")
    g(f"""
    global_load_dwordx2 v[42:43], v110, {WSB} sc1
    global_load_dwordx4 v[44:47], v111, {WSB} sc1
    s_add_u32 {T2}, {T2}, 1
    s_waitcnt vmcnt(0)
    v_cmp_eq_u32 vcc, {TAG}, v43
    v_cmp_eq_u32 s[56:57], {TAG}, v45
    v_cmp_eq_u32 s[58:59], {TAG}, v47
    s_nop 1
    s_and_b64 vcc, vcc, s[56:57]
    s_and_b64 vcc, vcc, s[58:59]
    s_cmp_eq_u64 vcc, -1
    s_cbranch_scc1 L_ook
    s_cmp_lt_u32 {T2}, {spin}
    s_cbranch_scc1 L_opoll
    """)
    g.lab("L_ook")
    g(f"""
    v_cvt_pk_bf16_f32 v42, v42, v42
    s_mul_i32 {T0}, {WAVE}, 144
    v_lshlrev_b32 v1, 1, v0
    v_add_u32 v1, {T0}, v1
    ds_write_b16 v1, v42 offset:{AIMG}
    v_mov_b32 v45, v46
    s_lshl_b32 {T0}, {WAVE}, 3
    v_mov_b32 v1, {T0}
    s_mov_b64 exec, 1
    ds_write_b64 v1, v[44:45] offset:{STATS}
    s_mov_b64 exec, -1
    s_waitcnt lgkmcnt(0)
    s_barrier
    """)
    stamp(9)
    g(f"s_cmp_lt_u32 {WAVE}, 9")
    g("s_cbranch_scc0 L_notproj")
    g(f"""
    v_mul_u32_u24 v1, 144, v2
    v_lshl_add_u32 v1, v3, 4, v1
    ds_read_b128 v[42:45], v1 offset:{AIMG}
    ds_read_b128 v[46:49], v1 offset:{AIMG+64}
    v_lshrrev_b32 v110, 2, v2
    v_lshl_add_u32 v110, v3, 3, v110
    v_mul_u32_u24 v110, 288, v110
    v_and_b32 v111, 3, v0
    v_lshl_add_u32 v110, v111, 3, v110
    s_lshl_b32 {T0}, {WAVE}, 5
    s_add_u32 {T0}, {T0}, {W}
    v_add_u32 v110, {T0}, v110
    ds_read_b64_tr_b16 v[50:51], v110
    ds_read_b64_tr_b16 v[52:53], v110 offset:{4*288}
    ds_read_b64_tr_b16 v[54:55], v110 offset:{32*288}
    ds_read_b64_tr_b16 v[56:57], v110 offset:{36*288}
    v_lshlrev_b32 v111, 5, v3
    v_mov_b32 v66, 0
    v_mov_b32 v67, 0
    v_mov_b32 v68, 0
    v_mov_b32 v69, 0
    ds_read_b128 v[58:61], v111 offset:{STATS}
    ds_read_b128 v[62:65], v111 offset:{STATS+16}
    s_waitcnt lgkmcnt(2)
    v_mfma_f32_16x16x32_bf16 v[66:69], v[42:45], v[50:53], v[66:69]
    v_mfma_f32_16x16x32_bf16 v[66:69], v[46:49], v[54:57], v[66:69]
    s_waitcnt lgkmcnt(0)
    v_max3_f32 v70, v58, v60, v62
    v_max_f32 v70, v70, v64
    v_sub_f32 v58, v58, v70
    v_sub_f32 v60, v60, v70
    v_sub_f32 v62, v62, v70
    v_sub_f32 v64, v64, v70
    v_exp_f32 v58, v58
    v_exp_f32 v60, v60
    v_exp_f32 v62, v62
    v_exp_f32 v64, v64
    s_nop 0
    v_mul_f32 v71, v58, v59
    v_fmac_f32 v71, v60, v61
    v_fmac_f32 v71, v62, v63
    v_fmac_f32 v71, v64, v65
    v_rcp_f32 v71, v71
    v_mul_f32 v72, v58, v66
    v_fmac_f32 v72, v60, v67
    v_fmac_f32 v72, v62, v68
    v_fmac_f32 v72, v64, v69
    v_mul_f32 v72, v72, v71
    v_mov_b32 v73, {TAG}
    """)
    g(f"""
    s_mul_i32 {T0}, {S}, {4*9*8192}
    s_lshl_b32 {T1}, {WAVE}, 13
    s_add_u32 {T0}, {T0}, {T1}
    s_lshl_b32 {T1}, {HKV}, 2
    s_add_u32 {T1}, {T1}, {B}
    s_lshl_b32 {T1}, {T1}, 7
    s_add_u32 {T0}, {T0}, {T1}
    s_add_u32 {T0}, {T0}, {WS_P}
    v_mul_u32_u24 v1, {9*8192}, v3
    v_lshl_add_u32 v1, v2, 3, v1
    v_add_u32 v1, {T0}, v1
    global_store_dwordx2 v1, v[72:73], {WSB} sc1
    """)
    stamp(10)
    g("s_branch L_fin")
    g.lab("L_notproj")
    g(f"""
    s_cmp_eq_u32 {WAVE}, 15
    s_cbranch_scc0 L_fin
    s_cmp_lt_u32 s2, 144
    s_cbranch_scc0 L_fin
    s_and_b32 {T0}, s2, 3
    s_bfe_u32 {T1}, s2, 0x20002
    s_lshr_b32 {T2}, s2, 4
    s_lshl_b32 {T3}, {T0}, 2
    s_add_u32 {T3}, {T3}, {T1}
    s_mul_i32 {T3}, {T3}, 9
    s_add_u32 {T3}, {T3}, {T2}
    s_lshl_b32 {T3}, {T3}, 13
    s_add_u32 {T3}, {T3}, {WS_P}
    v_add_u32 v110, {T3}, v4
    s_mul_i32 {T1}, {T1}, 1152
    s_mul_i32 {T0}, {T0}, 288
    s_add_u32 {T1}, {T1}, {T0}
    s_lshl_b32 {T2}, {T2}, 5
    s_add_u32 {T1}, {T1}, {T2}
    v_lshlrev_b32 v111, 2, v0
    v_add_u32 v111, {T1}, v111
    s_mov_b32 {T2}, 0
    """)
    g.lab("L_ppoll")
    for n in range(8):
        g(f"global_load_dwordx4 v[{42+4*n}:{45+4*n}], v110, {WSB} offset:{n*1024 if n < 4 else 0} sc1" if n < 4 else
          f"global_load_dwordx4 v[{42+4*n}:{45+4*n}], v112, {WSB} offset:{(n-4)*1024} sc1")
        if n == 0:
            g("v_add_u32 v112, 4096, v110")
    g(f"""
    s_add_u32 {T2}, {T2}, 1
    s_mov_b64 s[56:57], -1
    """)
    for n in range(8):
        g(f"s_waitcnt vmcnt({7-n})")
        g(f"v_cmp_eq_u32 vcc, {TAG}, v{43+4*n}")
        g(f"v_cmp_eq_u32 s[58:59], {TAG}, v{45+4*n}")
        g("s_nop 1")
        g("s_and_b64 s[56:57], s[56:57], vcc")
        g("s_and_b64 s[56:57], s[56:57], s[58:59]")
    g(f"""
    s_cmp_eq_u64 s[56:57], -1
    s_cbranch_scc1 L_pok
    s_cmp_lt_u32 {T2}, {spin}
    s_cbranch_scc1 L_ppoll
    """)
    g.lab("L_pok")
    for n in range(1, 8):
        g(f"v_add_f32 v42, v42, v{42+4*n}")
        g(f"v_add_f32 v44, v44, v{44+4*n}")
    g("""
    s_nop 1
    v_add_f32_dpp v42, v42, v42 row_ror:8 row_mask:0xf bank_mask:0xf
    v_add_f32_dpp v44, v44, v44 row_ror:8 row_mask:0xf bank_mask:0xf
    s_nop 0
    v_mov_b32 v43, v42
    v_mov_b32 v45, v44
    s_nop 1
    v_permlane16_swap_b32 v42, v43
    v_permlane16_swap_b32 v44, v45
    s_nop 1
    v_add_f32 v42, v42, v43
    v_add_f32 v44, v44, v45
    s_nop 0
    v_mov_b32 v43, v42
    v_mov_b32 v45, v44
    s_nop 1
    v_permlane32_swap_b32 v42, v43
    v_permlane32_swap_b32 v44, v45
    s_nop 1
    v_add_f32 v42, v42, v43
    v_add_f32 v44, v44, v45
    s_nop 0
    v_cvt_pk_bf16_f32 v42, v42, v44
    s_mov_b64 exec, 0xff
    """)
    g(f"buffer_store_dword v42, v111, {sOUT}, 0 offen")
    g("s_mov_b64 exec, -1")
    g(f"""
    s_cmp_eq_u32 s2, 0
    s_cbranch_scc0 L_fin
    v_mov_b32 v1, 0
    v_mov_b32 v43, {TAG}
    s_mov_b64 exec, 1
    global_store_dword v1, v43, {WSB} sc1
    s_mov_b64 exec, -1
    """)
    g.lab("L_fin")
    if fixed:
        g.lab("L_hold")
        g("s_memrealtime s[90:91]")
        g("s_waitcnt lgkmcnt(0)")
        g("s_sub_u32 s92, s90, s94")
        g(f"s_cmp_lt_u32 s92, {fixed}")
        g("s_cbranch_scc1 L_hold")
    if ts:
        g("s_memrealtime s[90:91]")
        g("s_waitcnt lgkmcnt(0)")
    if dbgts:
        g(f"s_cmp_eq_u32 {WAVE}, 0")
        g("s_cbranch_scc1 L_dbg")
        g(f"s_cmp_eq_u32 {WAVE}, 9")
        g("s_cbranch_scc1 L_dbg")
        g(f"s_cmp_eq_u32 {WAVE}, 15")
        g("s_cbranch_scc0 L_end")
        g.lab("L_dbg")
        for _ in range(8):
            g("s_sleep 127")
        g("s_mov_b64 exec, 1")
        g("v_mov_b32 v1, 0")
        g("s_not_b32 s92, s64")
        g("v_mov_b32 v2, s92")
        g("global_atomic_umax v1, v2, s[16:17]")
        for k in range(1, 11):
            g(f"v_mov_b32 v2, s{64+2*k}")
            g(f"global_atomic_umax v1, v2, s[16:17] offset:{4*k}")
        g("v_mov_b32 v2, s90")
        g("global_atomic_umax v1, v2, s[16:17] offset:44")
        g("v_mov_b32 v2, s64")
        g("global_atomic_umax v1, v2, s[16:17] offset:48")
    elif ts:
        pass
    if ts and not dbgts:
        g(f"""
        s_lshl_b32 {T0}, s2, 4
        s_add_u32 {T0}, {T0}, {WAVE}
        s_lshl_b32 {T0}, {T0}, 7
        s_add_u32 {T0}, {T0}, {WS_TS}
        v_mov_b32 v1, {T0}
        s_mov_b64 exec, 1
        """)
        for k in range(13):
            g(f"v_mov_b32 v2, s{64+2*k}")
            g(f"global_store_dword v1, v2, {WSB} offset:{4*k}")
        g("v_mov_b32 v2, s90")
        g(f"global_store_dword v1, v2, {WSB} offset:60")
    g.lab("L_end")
    g("s_endpgm")
    tail = f"""
.section .rodata,"a"
.p2align 6
.amdhsa_kernel {NAME}
  .amdhsa_next_free_vgpr 128
  .amdhsa_next_free_sgpr 96
  .amdhsa_accum_offset 128
  .amdhsa_group_segment_fixed_size 0
  .amdhsa_kernarg_size 64
  .amdhsa_user_sgpr_count 2
  .amdhsa_user_sgpr_kernarg_segment_ptr 1
  .amdhsa_system_sgpr_workgroup_id_x 1
.end_amdhsa_kernel
"""
    return "\n".join(hdr) + "\n" + "\n".join(g.L) + tail

if __name__ == "__main__":
    import argparse
    ap = argparse.ArgumentParser()
    ap.add_argument("-o", default="k.s")
    ap.add_argument("--depth", type=int, default=3)
    ap.add_argument("--ts", action="store_true")
    ap.add_argument("--mimic", action="store_true")
    ap.add_argument("--spin", type=int, default=200000)
    ap.add_argument("--defw", action="store_true")
    ap.add_argument("--dbgts", action="store_true")
    ap.add_argument("--fixed", type=int, default=0)
    a = ap.parse_args()
    open(a.o, "w").write(gen(depth=a.depth, ts=a.ts, mimic=a.mimic, spin=a.spin, nt_w=not a.defw, dbgts=a.dbgts, fixed=a.fixed))
```

```python
import sys, struct
NAME = "standalone__sliding_block_cached__decode_kernel"

ML    = 0
STATS = 64
MW    = 192
QIMG  = 256
PIMG  = 768
AIMG  = 2816
MARR  = 5120
XIMG  = 6144
W     = 10752
KIMG  = 29184
PART  = KIMG
LDS_BYTES = KIMG + 131072
WS_OS = 4096
WS_O  = 65536
WS_Q  = 589824
WS_P  = 1114112
WS_TS = 4*1024*1024

SCALE_LOG2E = 0.08838834764831845 * 1.4426950408889634

def f2u(x):
    return struct.unpack("<I", struct.pack("<f", x))[0]

class G:
    def __init__(s):
        s.L = []
    def __call__(s, t):
        for line in t.strip().split("\n"):
            s.L.append("    " + line.strip())
    def lab(s, t):
        s.L.append(t + ":")

def gen(depth=2, nq=10, depth2=0, first=1, swapbs=False, spin=100000, ts=False, mimic=False, nt_w=True, warm_out=True,
        dbgts=False, fixed=0, w0late=True, warm_wo=True, wopos=16, hkvxor=0, hkvmap=0, cpf=True, pret=True, pretq=True, pretmod=''):
    ts = ts or dbgts
    g = G()
    hdr = [f"; @launch grid=(256,1,1) block=(1024,1,1) lds={LDS_BYTES}",
           '.amdgcn_target "amdgcn-amd-amdhsa--gfx950"', ".text", f".globl {NAME}", ".p2align 8",
           f".type {NAME},@function", f"{NAME}:"]
    NT = " nt"
    NTW = " nt" if nt_w else ""
    sK, sV, sWQ, sWO, sX, sOUT = "s[20:23]", "s[24:27]", "s[28:31]", "s[32:35]", "s[36:39]", "s[40:43]"
    WSB = "s[18:19]"
    HKV, J, B, S = "s44", "s45", "s46", "s47"
    KVB, ROT, TAG = "s48", "s49", "s50"
    T0, T1, T2, T3 = "s51", "s52", "s53", "s54"
    KM0 = "s55"
    WAVE = "s3"
    CS = 1.4426950408889634 if mimic else SCALE_LOG2E
    def stamp(k):
        if ts:
            g(f"s_memrealtime s[{64+2*k}:{65+2*k}]")
    def srd(dst, lo, hi, size):
        a = int(dst[2:dst.index(":")])
        g(f"""
        s_mov_b32 s{a}, {lo}
        s_and_b32 s{a+1}, {hi}, 0xffff
        s_mov_b32 s{a+2}, {size}
        s_mov_b32 s{a+3}, 0x20000
        """)
    g("s_cmp_ge_u32 s2, 256")
    g("s_cbranch_scc1 L_end")
    if ts:
        for k in range(1, 15):
            g(f"s_mov_b32 s{64+2*k}, 0")
    stamp(0)
    if fixed:
        g("s_memrealtime s[94:95]")
    g("s_load_dwordx16 s[4:19], s[0:1], 0")
    g(f"""
    v_lshrrev_b32 v1, 6, v0
    v_and_b32 v0, 63, v0
    v_readfirstlane_b32 {WAVE}, v1
    {"s_and_b32 " + HKV + ", s2, 15" if hkvmap == 0 else "s_and_b32 " + HKV + ", s2, 7"}
    {"s_nop 0" if hkvmap == 0 else "s_lshl_b32 " + HKV + ", " + HKV + ", 1"}
    {"s_nop 0" if hkvmap == 0 else "s_bfe_u32 " + T1 + ", s2, 0x10003"}
    {"s_nop 0" if hkvmap == 0 else "s_or_b32 " + HKV + ", " + HKV + ", " + T1}
    s_xor_b32 {HKV}, {HKV}, {hkvxor}
    s_lshr_b32 {T0}, s2, 4
    s_lshr_b32 {B if not swapbs else S}, {T0}, 2
    s_and_b32 {S if not swapbs else B}, {T0}, 3
    s_lshl_b32 {J}, {B}, 2
    s_add_u32 {J}, {J}, {S}
    v_lshrrev_b32 v1, 3, v0
    v_lshlrev_b32 v1, 13, v1
    v_and_b32 v9, 7, v0
    v_lshl_add_u32 v9, v9, 4, v1
    v_add_u32 v127, 36, v0
    v_lshrrev_b32 v1, 3, v127
    v_lshlrev_b32 v1, 13, v1
    v_and_b32 v127, 7, v127
    v_lshl_add_u32 v127, v127, 4, v1
    v_lshlrev_b32 v4, 4, v0
    """)
    g(f"""
    s_lshr_b32 {T2}, {J}, 2
    s_mul_i32 {T0}, {T2}, 144
    s_mul_i32 {T1}, {WAVE}, 9
    s_add_u32 {T0}, {T0}, {T1}
    s_lshl_b32 {T0}, {T0}, 13
    s_lshl_b32 {T1}, {HKV}, 9
    s_add_u32 {T0}, {T0}, {T1}
    s_and_b32 {T1}, {J}, 3
    s_lshl_b32 {T1}, {T1}, 7
    s_add_u32 {T0}, {T0}, {T1}
    s_mul_i32 {T1}, {WAVE}, 1152
    s_add_u32 m0, {T1}, {W}
    s_mul_i32 {T2}, {T2}, 288
    s_mul_i32 {T1}, {WAVE}, 1152
    s_add_u32 {T2}, {T2}, {T1}
    s_mul_i32 {T3}, {WAVE}, 288
    s_waitcnt lgkmcnt(0)
    """)
    srd(sWQ, "s10", "s11", 576*8192)
    g(f"""
    s_mov_b32 exec_lo, -1
    s_mov_b32 exec_hi, 0xf
    buffer_load_dwordx4 v9, {sWQ}, {T0} offen{NTW} lds
    s_add_u32 m0, m0, 576
    s_mov_b32 s36, s4
    s_and_b32 s37, s5, 0xffff
    buffer_load_dwordx4 v127, {sWQ}, {T0} offen{NTW} lds
    s_mov_b32 s38, 4608
    s_mov_b32 s39, 0x20000
    s_mov_b64 exec, -1
    s_cmp_lt_u32 {WAVE}, 4
    s_cbranch_scc0 L_nox
    s_add_u32 m0, {T3}, {XIMG}
    s_mov_b32 exec_lo, 0x3ffff
    s_mov_b32 exec_hi, 0
    buffer_load_dwordx4 v4, {sX}, {T2} offen lds
    s_mov_b64 exec, -1
    """)
    g.lab("L_nox")
    g(f"""
    v_mov_b32 v110, 0
    v_mov_b32 v111, 0
    v_mov_b32 v112, 0
    v_mov_b32 v113, 0
    s_cmp_eq_u32 {WAVE}, 0
    s_cbranch_scc0 L_i1
    global_load_dword v126, v110, {WSB}
    """)
    g.lab("L_i1")
    g(f"""
    s_cmp_eq_u32 {WAVE}, 1
    s_cbranch_scc0 L_i3
    ds_write_b128 v112, v[110:113] offset:{ML}
    ds_write_b128 v112, v[110:113] offset:{ML+16}
    s_waitcnt lgkmcnt(0)
    """)
    g.lab("L_i3")
    g(f"""
    s_lshl_b32 {T0}, {B}, 4
    s_add_u32 {T0}, {T0}, {HKV}
    s_lshl_b32 {KVB}, {T0}, 21
    s_lshl_b32 {T0}, {S}, 17
    s_add_u32 {KVB}, {KVB}, {T0}
    s_add_u32 {KVB}, {KVB}, 0x180000
    s_lshl_b32 {T0}, {WAVE}, 13
    s_add_u32 {KVB}, {KVB}, {T0}
    s_add_u32 {KM0}, {T0}, {KIMG}
    s_lshr_b32 {ROT}, s2, 3
    s_add_u32 {ROT}, {ROT}, {WAVE}
    v_and_b32 v2, 15, v0
    v_lshrrev_b32 v3, 4, v0
    v_xor_b32 v1, v2, v3
    v_lshlrev_b32 v1, 4, v1
    v_lshl_add_u32 v5, v3, 8, v1
    v_xor_b32 v6, 64, v5
    v_xor_b32 v7, 0x80, v5
    v_xor_b32 v8, 0xc0, v5
    """)
    srd(sK, "s6", "s7", 0x8000000)
    srd(sV, "s8", "s9", 0x8000000)
    g("s_barrier")
    VREG = 10
    def stream_load(n):
        m = n & 7
        g(f"""
        s_add_u32 {T0}, {ROT}, {m}
        s_and_b32 {T0}, {T0}, 7
        s_lshl_b32 {T0}, {T0}, 10
        s_add_u32 {T0}, {T0}, {KVB}
        """)
        if n < 8:
            g(f"""
            s_add_u32 m0, {KM0}, {m*1024}
            s_nop 0
            buffer_load_dwordx4 v{5 + (m & 3)}, {sK}, {T0} offen{NT} lds
            """)
        else:
            r = VREG + 4*m
            g(f"buffer_load_dwordx4 v[{r}:{r+3}], v4, {sV}, {T0} offen{NT}")
    def masked_poll(lbl, addr_lo, addr_hi, base, cnt_reg, ts_slot=None, first_round_extra=None):
        PEND = "s62"
        g(f"s_mov_b32 {PEND}, 0xff")
        g(f"s_mov_b32 {cnt_reg}, 0")
        g.lab(f"{lbl}_round")
        for n in range(8):
            g(f"s_bitcmp1_b32 {PEND}, {n}")
            g(f"s_cbranch_scc0 {lbl}_s{n}")
            g(f"global_load_dwordx4 v[{base+4*n}:{base+4*n+3}], v{addr_lo if n < 4 else addr_hi}, {WSB} offset:{(n & 3)*1024} sc1")
            g.lab(f"{lbl}_s{n}")
        g(f"s_add_u32 {cnt_reg}, {cnt_reg}, 1")
        g("s_waitcnt vmcnt(0)")
        for n in range(8):
            g(f"s_bitcmp1_b32 {PEND}, {n}")
            g(f"s_cbranch_scc0 {lbl}_c{n}")
            g(f"v_cmp_eq_u32 vcc, {TAG}, v{base+4*n+1}")
            g(f"v_cmp_eq_u32 s[58:59], {TAG}, v{base+4*n+3}")
            g("s_nop 1")
            g("s_and_b64 vcc, vcc, s[58:59]")
            g("s_cmp_eq_u64 vcc, -1")
            g(f"s_cbranch_scc0 {lbl}_c{n}")
            g(f"s_bitset0_b32 {PEND}, {n}")
            g.lab(f"{lbl}_c{n}")
        g(f"s_cmp_eq_u32 {PEND}, 0")
        g(f"s_cbranch_scc1 {lbl}_done")
        g(f"s_cmp_lt_u32 {cnt_reg}, {spin}")
        g(f"s_cbranch_scc1 {lbl}_round")
        g.lab(f"{lbl}_done")
    def lds_spin(lbl, off, thresh, tmpv, zero_v):
        g(f"s_mov_b32 {T2}, 0")
        g.lab(lbl)
        g(f"""
        ds_read_b32 v{tmpv}, v{zero_v} offset:{off}
        s_add_u32 {T2}, {T2}, 1
        s_waitcnt lgkmcnt(0)
        v_readfirstlane_b32 {T0}, v{tmpv}
        s_cmp_ge_u32 {T2}, {spin*8}
        s_cbranch_scc1 {lbl}_ok
        s_cmp_lt_u32 {T0}, {thresh}
        s_cbranch_scc1 {lbl}
        """)
        g.lab(f"{lbl}_ok")
    uniq = [0]
    def pre_qk():
        g(f"""
        v_xor_b32 v1, v2, v3
        v_lshlrev_b32 v1, 4, v1
        v_lshl_add_u32 v1, v2, 8, v1
        v_add_u32 v110, {KM0}, v1
        v_xor_b32 v111, 64, v110
        v_xor_b32 v112, 0x80, v110
        v_xor_b32 v113, 0xc0, v110
        """)
        for t in range(2):
            for j in range(4):
                r = 42 + (t*4 + j)*4
                g(f"ds_read_b128 v[{r}:{r+3}], v{110+j} offset:{t*4096}")
        g("""
        v_and_b32 v1, 1, v0
        v_cmp_eq_u32 vcc, 1, v1
        v_mov_b32 v114, 0x0c0c0100
        v_mov_b32 v115, 0x01000c0c
        v_mov_b32 v116, 0x0c0c0302
        v_mov_b32 v117, 0x03020c0c
        v_cndmask_b32 v114, v114, v115, vcc
        v_cndmask_b32 v116, v116, v117, vcc
        v_mov_b32 v115, 0x0c0c0c0c
        v_bfe_u32 v1, v0, 1, 2
        """)
        for r in range(4):
            g(f"v_cmp_eq_u32 vcc, {r}, v1")
            g(f"v_mov_b32 v{90+2*r}, 0")
            g(f"v_mov_b32 v{91+2*r}, 0")
            g(f"v_cndmask_b32 v{102+r}, v115, v114, vcc")
            g(f"v_cndmask_b32 v{106+r}, v115, v116, vcc")
        g(f"""
        v_and_b32 v1, 1, v0
        v_lshlrev_b32 v1, 8, v1
        v_lshl_add_u32 v120, v3, 4, v1
        v_lshrrev_b32 v1, 5, v0
        v_lshlrev_b32 v121, 2, v1
        v_and_b32 v122, 3, v0
        v_lshlrev_b32 v122, 4, v122
        v_bfe_u32 v123, v0, 2, 3
        v_lshl_add_u32 v122, v123, 1, v122
        v_lshl_add_u32 v122, v1, 6, v122
        s_lshl_b32 {T1}, {WAVE}, 7
        s_add_u32 {T1}, {T1}, {PIMG}
        v_add_u32 v122, {T1}, v122
        v_lshrrev_b32 v123, 3, v2
        v_lshlrev_b32 v123, 6, v123
        v_lshl_add_u32 v123, v3, 4, v123
        v_add_u32 v123, {T1}, v123
        v_mov_b32 v98, 0
        v_mov_b32 v99, 0
        v_mov_b32 v100, 0
        v_mov_b32 v101, 0
        v_cmp_le_u32 vcc, 18, v0
        v_mov_b32 v1, 0
        v_mov_b32 v124, {1152 - 18*16}
        v_cndmask_b32 v1, v1, v124, vcc
        v_add_u32 v124, v1, v4
        """)
        if pret:
            u = uniq[0]; uniq[0] += 1
            g(f"""
            s_cmp_lt_u32 {WAVE}, 9
            s_cbranch_scc0 L_np1_{u}
            s_mul_i32 {T0}, {S}, {4*9*8192}
            s_lshl_b32 {T1}, {WAVE}, 13
            s_add_u32 {T0}, {T0}, {T1}
            s_lshl_b32 {T1}, {HKV}, 2
            s_add_u32 {T1}, {T1}, {B}
            s_lshl_b32 {T1}, {T1}, 7
            s_add_u32 {T0}, {T0}, {T1}
            s_add_u32 {T0}, {T0}, {WS_P}
            v_mul_u32_u24 v116, {9*8192}, v0
            v_add_u32 v116, {T0}, v116
            s_mov_b64 exec, 0xf
            global_load_dword v9, v116, {WSB} {pretmod}
            s_mov_b64 exec, -1
            s_branch L_np2_{u}
            """)
            g.lab(f"L_np1_{u}")
            g(f"""
            s_cmp_eq_u32 {WAVE}, 9
            s_cbranch_scc0 L_np2_{u}
            s_lshl_b32 {T0}, {HKV}, 4
            s_add_u32 {T0}, {T0}, {J}
            s_lshl_b32 {T1}, {T0}, 11
            s_add_u32 {T1}, {T1}, {WS_O}
            v_lshlrev_b32 v116, 7, v0
            v_add_u32 v116, {T1}, v116
            s_lshl_b32 {T1}, {T0}, 7
            s_add_u32 {T1}, {T1}, {WS_OS}
            v_mov_b32 v117, {T1}
            v_cmp_eq_u32 vcc, 16, v0
            s_nop 1
            v_cndmask_b32 v116, v116, v117, vcc
            s_mov_b64 exec, 0x1ffff
            global_load_dword v9, v116, {WSB} {pretmod}
            s_mov_b64 exec, -1
            """)
            g.lab(f"L_np2_{u}")
    if cpf:
        g(f"""
        s_cmp_eq_u32 {WAVE}, 4
        s_cbranch_scc0 L_nocpf
        s_getpc_b64 s[56:57]
        """)
        g.lab("L_pc")
        g(f"""
        v_lshlrev_b32 v1, 7, v0
        v_min_u32 v110, L_end-L_pc, v1
        global_load_dword v112, v110, s[56:57]
        """)
        if ts:
            g(f"""
            v_add_u32 v1, 8192, v1
            v_min_u32 v111, L_end-L_pc, v1
            global_load_dword v113, v111, s[56:57]
            """)
        g.lab("L_nocpf")
    if pret and pretq:
        g(f"""
        s_cmp_eq_u32 {WAVE}, 5
        s_cbranch_scc0 L_nopq
        s_lshl_b32 {T0}, {HKV}, 15
        s_lshr_b32 {T1}, {J}, 2
        s_lshl_b32 {T1}, {T1}, 11
        s_add_u32 {T0}, {T0}, {T1}
        s_and_b32 {T1}, {J}, 3
        s_lshl_b32 {T1}, {T1}, 9
        s_add_u32 {T0}, {T0}, {T1}
        s_add_u32 {T0}, {T0}, {WS_Q}
        v_bfe_u32 v1, v0, 2, 2
        v_lshlrev_b32 v110, 13, v1
        v_and_b32 v1, 3, v0
        v_lshl_add_u32 v110, v1, 7, v110
        v_add_u32 v110, {T0}, v110
        s_mov_b64 exec, 0xffff
        global_load_dword v9, v110, {WSB} {pretmod}
        s_mov_b64 exec, -1
        """)
        g.lab("L_nopq")
    g(f"s_cmp_eq_u32 {WAVE}, 0")
    g("s_cbranch_scc1 L_w0")
    for n in range(first):
        stream_load(n)
    srd(sWO, "s12", "s13", 4096*1152)
    srd(sOUT, "s14", "s15", 4608)
    if warm_wo:
        g(f"""
        s_cmp_eq_u32 {WAVE}, 3
        s_cbranch_scc0 L_nowarm
        s_lshl_b32 {T0}, {HKV}, 8
        s_lshl_b32 {T1}, {B}, 6
        s_add_u32 {T0}, {T0}, {T1}
        s_mul_i32 {T0}, {T0}, 1152
        v_and_b32 v1, 1, v0
        v_mul_u32_u24 v1, {63*1152}, v1
        buffer_load_dword v127, v1, {sWO}, {T0} offen
        v_mov_b32 v1, {WS_P + 1100000}
        global_load_dword v126, v1, {WSB}
        s_waitcnt vmcnt({first+2})
        s_branch L_warmed
        """)
        g.lab("L_nowarm")
    g(f"s_waitcnt vmcnt({first})")
    if warm_wo:
        g.lab("L_warmed")
    g(f"""
    v_mov_b32 v1, 0
    v_mov_b32 v110, 1
    s_mov_b64 exec, 1
    ds_add_u32 v1, v110 offset:{ML+20}
    s_mov_b64 exec, -1
    """)
    stamp(1)
    for n in range(first, nq + 1):
        if n >= depth:
            g(f"s_waitcnt vmcnt({depth-1})")
        stream_load(n)
    stamp(2)
    g(f"s_waitcnt vmcnt({nq - 7})")
    pre_qk()
    g("s_branch L_bar2")
    g.lab("L_w0")
    nfront = first if w0late else nq + 1
    for n in range(nfront):
        stream_load(n)
    srd(sWO, "s12", "s13", 4096*1152)
    srd(sOUT, "s14", "s15", 4608)
    g(f"""
    v_and_b32 v1, 3, v0
    v_mul_u32_u24 v1, 288, v1
    v_lshl_add_u32 v42, v3, 4, v1
    v_add_u32 v42, {XIMG}, v42
    v_lshl_add_u32 v43, v3, 3, v1
    v_add_u32 v43, {XIMG+256}, v43
    v_lshrrev_b32 v1, 2, v2
    v_lshl_add_u32 v120, v3, 3, v1
    v_lshlrev_b32 v120, 7, v120
    v_lshl_add_u32 v121, v3, 2, v1
    v_lshlrev_b32 v121, 7, v121
    v_and_b32 v1, 3, v0
    v_lshl_add_u32 v120, v1, 3, v120
    v_lshl_add_u32 v121, v1, 3, v121
    v_add_u32 v120, {W}, v120
    v_add_u32 v121, {W + 128*128}, v121
    """)
    for r in range(44, 60):
        g(f"v_mov_b32 v{r}, 0")
    g(f"""
    v_mov_b32 v1, 0
    s_mov_b32 {T2}, 0
    s_waitcnt vmcnt({nfront})
    v_readfirstlane_b32 {TAG}, v126
    s_mul_i32 {TAG}, {TAG}, 1664525
    s_add_u32 {TAG}, {TAG}, 1013904223
    """)
    g.lab("L_cnt")
    g(f"""
    ds_read_b32 v110, v1 offset:{ML+20}
    s_add_u32 {T2}, {T2}, 1
    s_waitcnt lgkmcnt(0)
    v_readfirstlane_b32 {T0}, v110
    s_cmp_ge_u32 {T2}, {spin*8}
    s_cbranch_scc1 L_cntok
    s_cmp_lt_u32 {T0}, 15
    s_cbranch_scc1 L_cnt
    """)
    g.lab("L_cntok")
    stamp(1)
    for kk in range(4):
        g(f"ds_read_b128 v[{60+4*kk}:{63+4*kk}], v42 offset:{kk*64}")
    g("ds_read_b64 v[76:77], v43")
    def breads(kk, buf):
        base = 78 + buf*16
        for t in range(4):
            g(f"ds_read_b64_tr_b16 v[{base+4*t}:{base+4*t+1}], v120 offset:{kk*4096 + t*32}")
            g(f"ds_read_b64_tr_b16 v[{base+4*t+2}:{base+4*t+3}], v120 offset:{kk*4096 + t*32 + 512}")
    breads(0, 0)
    for kk in range(4):
        if kk < 3:
            g("s_waitcnt lgkmcnt(0)")
            breads(kk + 1, (kk + 1) & 1)
        else:
            g("s_waitcnt lgkmcnt(0)")
            for t in range(4):
                g(f"ds_read_b64_tr_b16 v[{78+2*t}:{79+2*t}], v121 offset:{t*32}")
        base = 78 + (kk & 1)*16
        for t in range(4):
            g(f"v_mfma_f32_16x16x32_bf16 v[{44+4*t}:{47+4*t}], v[{60+4*kk}:{63+4*kk}], v[{base+4*t}:{base+4*t+3}], v[{44+4*t}:{47+4*t}]")
    g("s_waitcnt lgkmcnt(0)")
    for t in range(4):
        g(f"v_mfma_f32_16x16x16_bf16 v[{44+4*t}:{47+4*t}], v[76:77], v[{78+2*t}:{79+2*t}], v[{44+4*t}:{47+4*t}]")
    g(f"""
    s_mov_b32 s56, 0xffff0000
    s_mov_b32 s57, 0
    s_mov_b32 s58, 0
    s_mov_b32 s59, 0xffff
    s_mov_b32 s60, 0
    s_mov_b32 s61, 0xffff0000
    s_lshl_b32 {T0}, {HKV}, 15
    s_lshr_b32 {T1}, {J}, 2
    s_lshl_b32 {T1}, {T1}, 11
    s_add_u32 {T0}, {T0}, {T1}
    s_and_b32 {T1}, {J}, 3
    s_lshl_b32 {T1}, {T1}, 9
    s_add_u32 {T0}, {T0}, {T1}
    s_add_u32 {T0}, {T0}, {WS_Q}
    v_lshlrev_b32 v78, 13, v3
    v_lshl_add_u32 v78, v2, 3, v78
    v_add_u32 v78, {T0}, v78
    v_mov_b32 v61, {TAG}
    v_mov_b32 v63, {TAG}
    v_mov_b32 v65, {TAG}
    v_mov_b32 v67, {TAG}
    """)
    for t in range(4):
        g(f"v_cndmask_b32 v{60+2*t}, v{44+4*t}, v{45+4*t}, s[56:57]")
        g(f"v_cndmask_b32 v{60+2*t}, v{60+2*t}, v{46+4*t}, s[58:59]")
        g(f"v_cndmask_b32 v{60+2*t}, v{60+2*t}, v{47+4*t}, s[60:61]")
        g(f"global_store_dwordx2 v78, v[{60+2*t}:{61+2*t}], {WSB} offset:{t*128} sc1")
    stamp(2)
    for n in range(nfront, nq + 1):
        stream_load(n)
    if warm_out:
        g(f"buffer_load_dword v125, v4, {sOUT}, 0 offen")
    g(f"""
    s_lshl_b32 {T0}, {HKV}, 15
    s_lshl_b32 {T1}, {B}, 13
    s_add_u32 {T0}, {T0}, {T1}
    s_add_u32 {T0}, {T0}, {WS_Q}
    v_add_u32 v110, {T0}, v4
    v_add_u32 v111, 4096, v110
    s_mov_b32 {T2}, 0
    """)
    masked_poll("L_qp", 110, 111, 44, T2)
    if ts: g(f"s_mov_b32 s86, {T2}")
    for hf in range(2):
        a0 = 44 + 4*hf
        for rq in range(1, 4):
            n = 2*rq + hf
            g(f"v_add_f32 v{a0}, v{a0}, v{44+4*n}")
            g(f"v_add_f32 v{a0+2}, v{a0+2}, v{46+4*n}")
    g(f"""
    v_cvt_pk_bf16_f32 v44, v44, v46
    v_cvt_pk_bf16_f32 v48, v48, v50
    v_lshlrev_b32 v1, 2, v0
    ds_write_b32 v1, v44 offset:{QIMG}
    ds_write_b32 v1, v48 offset:{QIMG+256}
    v_mov_b32 v1, 0
    v_mov_b32 v57, {TAG}
    v_mov_b32 v58, 1
    ds_write_b32 v1, v57 offset:{ML+16}
    ds_write_b32 v1, v58 offset:{ML+24}
    """)
    stamp(3)
    pre_qk()
    g("s_branch L_qready")
    g.lab("L_bar2")
    g("v_mov_b32 v1, 0")
    lds_spin("L_qflag", ML+24, 1, 126, 1)
    g.lab("L_qready")
    stamp(4)
    g(f"""
    ds_read_b128 v[74:77], v120 offset:{QIMG}
    ds_read_b128 v[78:81], v120 offset:{QIMG+64}
    ds_read_b128 v[82:85], v120 offset:{QIMG+128}
    ds_read_b128 v[86:89], v120 offset:{QIMG+192}
    v_mov_b32 v1, 0
    ds_read_b32 v126, v1 offset:{ML+16}
    """)
    g("s_waitcnt lgkmcnt(1)")
    for j in range(4):
        g(f"v_mfma_f32_16x16x32_bf16 v[90:93], v[{74+4*j}:{77+4*j}], v[{42+4*j}:{45+4*j}], v[90:93]")
        g(f"v_mfma_f32_16x16x32_bf16 v[94:97], v[{74+4*j}:{77+4*j}], v[{58+4*j}:{61+4*j}], v[94:97]")
    g(f"""
    s_mov_b32 s56, 0xffff0000
    s_mov_b32 s57, 0xffff0000
    s_mov_b32 s58, 0
    s_mov_b32 s59, -1
    s_mov_b32 {T3}, 0x{f2u(CS):08x}
    s_waitcnt lgkmcnt(0)
    v_readfirstlane_b32 {TAG}, v126
    s_nop 1
    v_cndmask_b32 v110, v90, v94, s[56:57]
    v_cndmask_b32 v111, v91, v95, s[56:57]
    v_cndmask_b32 v110, v110, v111, s[58:59]
    """)
    if mimic:
        g(f"""
        v_cvt_pk_bf16_f32 v110, v110, v110
        v_lshlrev_b32 v110, 16, v110
        v_mul_f32 v110, 0x{f2u(0.08838834764831845):08x}, v110
        v_cvt_pk_bf16_f32 v110, v110, v110
        v_lshlrev_b32 v110, 16, v110
        """)
    g(f"""
    s_nop 1
    v_max_f32_dpp v111, v110, v110 row_ror:8 row_mask:0xf bank_mask:0xf
    s_nop 1
    v_max_f32_dpp v111, v111, v111 row_ror:4 row_mask:0xf bank_mask:0xf
    s_nop 1
    v_max_f32_dpp v111, v111, v111 row_ror:2 row_mask:0xf bank_mask:0xf
    s_nop 1
    v_max_f32_dpp v111, v111, v111 row_ror:1 row_mask:0xf bank_mask:0xf
    s_nop 0
    v_mov_b32 v112, v111
    s_nop 1
    v_permlane16_swap_b32 v111, v112
    s_nop 1
    v_max_f32 v111, v111, v112
    s_lshl_b32 {T1}, {WAVE}, 2
    v_lshl_add_u32 v112, v121, 4, {T1}
    v_mov_b32 v114, 1
    v_mov_b32 v113, 0
    s_mov_b32 exec_lo, 1
    s_mov_b32 exec_hi, 1
    ds_write_b32 v112, v111 offset:{MARR}
    s_mov_b64 exec, 1
    ds_add_u32 v113, v114 offset:{ML+28}
    s_mov_b64 exec, -1
    v_mov_b32 v127, v111
    v_mul_f32 v115, {T3}, v111
    v_fma_f32 v110, v110, {T3}, -v115
    v_exp_f32 v110, v110
    s_nop 0
    v_cvt_pk_bf16_f32 v111, v110, v110
    ds_write_b16 v122, v111
    ds_read_b128 v[116:119], v123
    v_lshlrev_b32 v110, 16, v111
    s_nop 1
    v_add_f32_dpp v110, v110, v110 row_ror:8 row_mask:0xf bank_mask:0xf
    s_nop 1
    v_add_f32_dpp v110, v110, v110 row_ror:4 row_mask:0xf bank_mask:0xf
    s_nop 1
    v_add_f32_dpp v110, v110, v110 row_ror:2 row_mask:0xf bank_mask:0xf
    s_nop 1
    v_add_f32_dpp v110, v110, v110 row_ror:1 row_mask:0xf bank_mask:0xf
    s_nop 0
    v_mov_b32 v112, v110
    s_nop 1
    v_permlane16_swap_b32 v110, v112
    s_nop 1
    v_add_f32 v125, v110, v112
    s_waitcnt lgkmcnt(0)
    """)
    for n in range(8):
        src = 116 + (n >> 1)
        sel = 102 + (4 if (n & 1) else 0)
        for r in range(4):
            g(f"v_perm_b32 v{42+4*n+r}, v{src}, v{src}, v{sel+r}")
    stamp(5)
    def wo_issue():
        g(f"""
        s_lshl_b32 {T0}, {HKV}, 8
        s_lshl_b32 {T1}, {B}, 6
        s_add_u32 {T0}, {T0}, {T1}
        s_lshl_b32 {T1}, {WAVE}, 2
        s_add_u32 {T0}, {T0}, {T1}
        s_mul_i32 {T0}, {T0}, 1152
        s_mul_i32 {T1}, {S}, 288
        s_add_u32 {T0}, {T0}, {T1}
        s_mul_i32 {T1}, {WAVE}, {4*288}
        s_add_u32 m0, {T1}, {W}
        s_mov_b32 exec_lo, -1
        s_mov_b32 exec_hi, 0xf
        buffer_load_dwordx4 v124, {sWO}, {T0} offen{NTW} lds
        s_add_u32 {T0}, {T0}, {2*1152}
        s_add_u32 m0, m0, {2*288}
        s_nop 0
        buffer_load_dwordx4 v124, {sWO}, {T0} offen{NTW} lds
        s_mov_b64 exec, -1
        """)
    for n in range(nq + 1, 16):
        if n == wopos:
            wo_issue()
        if depth2:
            g(f"s_waitcnt vmcnt({depth2-1})")
        stream_load(n)
    if wopos >= 16:
        wo_issue()
    g(f"""
    s_lshl_b32 {T0}, {HKV}, 4
    s_add_u32 {T0}, {T0}, {J}
    s_lshl_b32 {T1}, {T0}, 11
    s_add_u32 {T1}, {T1}, {WS_O}
    v_add_u32 v104, {T1}, v4
    s_lshl_b32 {T1}, {T0}, 7
    s_add_u32 {T1}, {T1}, {WS_OS}
    v_add_u32 v105, {T1}, v4
    v_bfe_u32 v1, v0, 2, 1
    v_lshlrev_b32 v103, 2, v1
    v_lshrrev_b32 v1, 5, v0
    s_lshl_b32 {T0}, {WAVE}, 1
    v_add_u32 v113, {T0}, v1
    s_lshl_b32 {T0}, {HKV}, 4
    v_add_u32 v112, {T0}, v113
    v_lshlrev_b32 v110, 11, v112
    v_bfe_u32 v114, v0, 4, 1
    v_lshl_add_u32 v110, v114, 10, v110
    v_bfe_u32 v115, v0, 3, 1
    v_lshl_add_u32 v110, v115, 8, v110
    v_and_b32 v116, 7, v0
    v_lshl_add_u32 v110, v116, 4, v110
    s_lshr_b32 {T0}, {B}, 1
    s_lshl_b32 {T1}, {T0}, 9
    s_and_b32 {T2}, {B}, 1
    s_lshl_b32 {T2}, {T2}, 7
    s_add_u32 {T1}, {T1}, {T2}
    s_add_u32 {T1}, {T1}, {WS_O}
    v_add_u32 v110, {T1}, v110
    s_lshl_b32 {T0}, {T0}, 6
    s_add_u32 {T0}, {T0}, {WS_OS}
    v_lshlrev_b32 v111, 7, v112
    v_add_u32 v111, {T0}, v111
    v_mul_u32_u24 v117, 144, v113
    v_lshl_add_u32 v117, v116, 4, v117
    v_lshl_add_u32 v117, v115, 3, v117
    v_lshl_add_u32 v117, v114, 2, v117
    v_lshlrev_b32 v118, 3, v113
    v_mul_u32_u24 v1, 144, v2
    v_lshl_add_u32 v119, v3, 4, v1
    v_lshrrev_b32 v120, 2, v2
    v_lshl_add_u32 v120, v3, 3, v120
    v_mul_u32_u24 v120, 288, v120
    v_and_b32 v1, 3, v0
    v_lshl_add_u32 v120, v1, 3, v120
    s_lshl_b32 {T0}, {WAVE}, 5
    s_add_u32 {T0}, {T0}, {W}
    v_add_u32 v120, {T0}, v120
    v_lshlrev_b32 v121, 5, v3
    s_mul_i32 {T0}, {S}, {4*9*8192}
    s_lshl_b32 {T1}, {WAVE}, 13
    s_add_u32 {T0}, {T0}, {T1}
    s_lshl_b32 {T1}, {HKV}, 2
    s_add_u32 {T1}, {T1}, {B}
    s_lshl_b32 {T1}, {T1}, 7
    s_add_u32 {T0}, {T0}, {T1}
    s_add_u32 {T0}, {T0}, {WS_P}
    v_mul_u32_u24 v1, {9*8192}, v3
    v_lshl_add_u32 v1, v2, 3, v1
    v_add_u32 v122, {T0}, v1
    """)
    g("v_mov_b32 v1, 0")
    lds_spin("L_cnt2", ML+28, 16, 126, 1)
    g(f"""
    v_lshrrev_b32 v1, 5, v0
    v_lshlrev_b32 v126, 2, v1
    v_lshlrev_b32 v1, 6, v1
    ds_read_b128 v[74:77], v1 offset:{MARR}
    ds_read_b128 v[78:81], v1 offset:{MARR+16}
    ds_read_b128 v[82:85], v1 offset:{MARR+32}
    ds_read_b128 v[86:89], v1 offset:{MARR+48}
    s_waitcnt lgkmcnt(0)
    v_max3_f32 v74, v74, v75, v76
    v_max3_f32 v77, v77, v78, v79
    v_max3_f32 v80, v80, v81, v82
    v_max3_f32 v83, v83, v84, v85
    v_max3_f32 v86, v86, v87, v88
    v_max3_f32 v74, v74, v77, v80
    v_max3_f32 v83, v83, v86, v89
    v_max_f32 v74, v74, v83
    v_sub_f32 v75, v127, v74
    v_mul_f32 v75, {T3}, v75
    v_exp_f32 v75, v75
    s_nop 0
    v_mul_f32 v76, v75, v125
    s_mov_b32 exec_lo, 1
    s_mov_b32 exec_hi, 1
    ds_write_b32 v126, v74 offset:{ML}
    ds_add_f32 v126, v76 offset:{ML+8}
    s_mov_b64 exec, -1
    """)
    for n in range(8):
        g(f"s_waitcnt vmcnt({7-n+(2 if (8+n) < wopos else 0)})")
        g(f"v_mfma_f32_16x16x32_bf16 v[98:101], v[{42+4*n}:{45+4*n}], v[{VREG+4*n}:{VREG+4*n+3}], v[98:101]")
    stamp(6)
    g(f"""
    s_lshl_b32 {T0}, {WAVE}, 10
    s_add_u32 {T0}, {T0}, {PART}
    v_add_u32 v1, {T0}, v4
    s_nop 4
    v_mul_f32 v98, v75, v98
    v_mul_f32 v99, v75, v99
    v_mul_f32 v100, v75, v100
    v_mul_f32 v101, v75, v101
    ds_write_b128 v1, v[98:101]
    s_waitcnt lgkmcnt(0)
    s_barrier
    """)
    stamp(7)
    g(f"s_sub_u32 {T0}, {WAVE}, 9")
    g(f"s_cmp_lt_u32 {T0}, 2")
    g("s_cbranch_scc0 L_nopub")
    g(f"""
    s_lshl_b32 {T1}, {T0}, 3
    s_add_u32 {T1}, {T1}, {PART}
    v_add_u32 v1, {T1}, v4
    """)
    for w in range(12):
        g(f"ds_read_b64 v[{42+2*w}:{43+2*w}], v1 offset:{w*1024}")
    g(f"""
    ds_read_b32 v46+40, v103 offset:{ML}
    """.replace("v46+40", "v86"))
    g(f"ds_read_b32 v87, v103 offset:{ML+8}")
    g(f"""
    s_lshl_b32 {T1}, {T0}, 10
    v_add_u32 v104, {T1}, v104
    v_mov_b32 v91, {TAG}
    v_mov_b32 v93, {TAG}
    v_mov_b32 v95, {TAG}
    v_mov_b32 v97, {TAG}
    s_waitcnt lgkmcnt(10)
    """)
    for w in range(12, 16):
        g(f"ds_read_b64 v[{42+2*w}:{43+2*w}], v1 offset:{w*1024}")
    g("v_pk_add_f32 v[42:43], v[42:43], v[44:45]")
    g("v_pk_add_f32 v[46:47], v[46:47], v[48:49]")
    g("s_waitcnt lgkmcnt(6)")
    for w in (4, 6, 8, 10):
        g(f"v_pk_add_f32 v[42:43], v[42:43], v[{42+2*w}:{43+2*w}]")
        g(f"v_pk_add_f32 v[46:47], v[46:47], v[{44+2*w}:{45+2*w}]")
    g("s_waitcnt lgkmcnt(0)")
    for w in (12, 14):
        g(f"v_pk_add_f32 v[42:43], v[42:43], v[{42+2*w}:{43+2*w}]")
        g(f"v_pk_add_f32 v[46:47], v[46:47], v[{44+2*w}:{45+2*w}]")
    g(f"""
    v_mul_f32 v94, {T3}, v86
    v_mov_b32 v96, v87
    v_add_f32 v90, v42, v46
    v_add_f32 v92, v43, v47
    global_store_dwordx4 v104, v[90:93], {WSB} sc1
    s_cmp_eq_u32 {T0}, 0
    s_cbranch_scc0 L_nostats
    s_mov_b64 exec, 0xff
    global_store_dwordx4 v105, v[94:97], {WSB} sc1
    s_mov_b64 exec, -1
    """)
    g.lab("L_nostats")
    stamp(8)
    g("s_barrier")
    g("s_branch L_wowait")
    g.lab("L_nopub")
    g("s_barrier")
    g(f"s_cmp_lt_u32 {WAVE}, 8")
    g("s_cbranch_scc0 L_wowait")
    g(f"s_mov_b32 {T2}, 0")
    if ts:
        g("s_memrealtime s[96:97]")
        g("s_mov_b32 s98, 0")
    g.lab("L_opoll")
    g(f"""
    global_load_dwordx4 v[42:45], v110, {WSB} sc1
    global_load_dwordx4 v[46:49], v111, {WSB} sc1
    s_add_u32 {T2}, {T2}, 1
    s_waitcnt vmcnt(0)
    """)
    if ts:
        g(f"s_cmp_eq_u32 {T2}, 1")
        g("s_cbranch_scc0 L_nf")
        g("s_memrealtime s[98:99]")
        g.lab("L_nf")
    g(f"""
    v_cmp_eq_u32 vcc, {TAG}, v43
    v_cmp_eq_u32 s[56:57], {TAG}, v45
    v_cmp_eq_u32 s[58:59], {TAG}, v47
    v_cmp_eq_u32 s[60:61], {TAG}, v49
    s_nop 1
    s_and_b64 vcc, vcc, s[56:57]
    s_and_b64 s[58:59], s[58:59], s[60:61]
    s_and_b64 vcc, vcc, s[58:59]
    s_cmp_eq_u64 vcc, -1
    s_cbranch_scc1 L_ook
    s_cmp_lt_u32 {T2}, {spin}
    s_cbranch_scc1 L_opoll
    """)
    g.lab("L_ook")
    if ts:
        g(f"s_mov_b32 s88, {T2}")
        g("s_memrealtime s[92:93]")
    g(f"""
    v_cvt_pk_bf16_f32 v42, v42, v44
    v_mov_b32 v47, v48
    ds_write_b32 v117, v42 offset:{AIMG}
    s_mov_b32 exec_lo, 1
    s_mov_b32 exec_hi, 1
    ds_write_b64 v118, v[46:47] offset:{STATS}
    s_mov_b64 exec, -1
    """)
    g.lab("L_wowait")
    g("s_waitcnt vmcnt(0) lgkmcnt(0)")
    if ts:
        g("s_memrealtime s[94:95]")
    g("s_barrier")
    stamp(9)
    g(f"s_cmp_lt_u32 {WAVE}, 9")
    g("s_cbranch_scc0 L_notproj")
    g(f"""
    ds_read_b128 v[42:45], v119 offset:{AIMG}
    ds_read_b64_tr_b16 v[50:51], v120
    ds_read_b64_tr_b16 v[52:53], v120 offset:{4*288}
    ds_read_b128 v[46:49], v119 offset:{AIMG+64}
    ds_read_b64_tr_b16 v[54:55], v120 offset:{32*288}
    ds_read_b64_tr_b16 v[56:57], v120 offset:{36*288}
    ds_read_b128 v[58:61], v121 offset:{STATS}
    ds_read_b128 v[62:65], v121 offset:{STATS+16}
    v_mov_b32 v66, 0
    v_mov_b32 v67, 0
    v_mov_b32 v68, 0
    v_mov_b32 v69, 0
    v_mov_b32 v73, {TAG}
    s_waitcnt lgkmcnt(5)
    v_mfma_f32_16x16x32_bf16 v[66:69], v[42:45], v[50:53], v[66:69]
    s_waitcnt lgkmcnt(2)
    v_mfma_f32_16x16x32_bf16 v[66:69], v[46:49], v[54:57], v[66:69]
    s_waitcnt lgkmcnt(0)
    v_max3_f32 v70, v58, v60, v62
    v_max_f32 v70, v70, v64
    v_sub_f32 v58, v58, v70
    v_sub_f32 v60, v60, v70
    v_sub_f32 v62, v62, v70
    v_sub_f32 v64, v64, v70
    v_exp_f32 v58, v58
    v_exp_f32 v60, v60
    v_exp_f32 v62, v62
    v_exp_f32 v64, v64
    s_nop 0
    v_mul_f32 v71, v58, v59
    v_fmac_f32 v71, v60, v61
    v_fmac_f32 v71, v62, v63
    v_fmac_f32 v71, v64, v65
    v_rcp_f32 v71, v71
    v_mul_f32 v72, v58, v66
    v_fmac_f32 v72, v60, v67
    v_fmac_f32 v72, v62, v68
    v_fmac_f32 v72, v64, v69
    v_mul_f32 v72, v72, v71
    global_store_dwordx2 v122, v[72:73], {WSB} sc1
    """)
    stamp(10)
    g("s_barrier")
    g("s_branch L_fin")
    g.lab("L_notproj")
    g(f"""
    s_cmp_eq_u32 {WAVE}, 15
    s_cbranch_scc0 L_fin
    s_and_b32 {T0}, s2, 3
    s_bfe_u32 {T1}, s2, 0x20002
    s_lshr_b32 {T2}, s2, 4
    s_lshl_b32 {T3}, {T0}, 2
    s_add_u32 {T3}, {T3}, {T1}
    s_mul_i32 {T3}, {T3}, 9
    s_add_u32 {T3}, {T3}, {T2}
    s_lshl_b32 {T3}, {T3}, 13
    s_add_u32 {T3}, {T3}, {WS_P}
    v_add_u32 v110, {T3}, v4
    v_add_u32 v112, 4096, v110
    s_mul_i32 {T1}, {T1}, 1152
    s_mul_i32 {T0}, {T0}, 288
    s_add_u32 {T1}, {T1}, {T0}
    s_lshl_b32 {T2}, {T2}, 5
    s_add_u32 {T1}, {T1}, {T2}
    v_lshlrev_b32 v111, 2, v0
    v_add_u32 v111, {T1}, v111
    s_mov_b32 {T2}, 0
    s_barrier
    s_cmp_lt_u32 s2, 144
    s_cbranch_scc0 L_fin
    """)
    masked_poll("L_pp", 110, 112, 42, T2)
    if ts: g(f"s_mov_b32 s86, {T2}")
    for n in range(1, 8):
        g(f"v_add_f32 v42, v42, v{42+4*n}")
        g(f"v_add_f32 v44, v44, v{44+4*n}")
    g(f"""
    s_nop 1
    v_add_f32_dpp v42, v42, v42 row_ror:8 row_mask:0xf bank_mask:0xf
    v_add_f32_dpp v44, v44, v44 row_ror:8 row_mask:0xf bank_mask:0xf
    s_nop 0
    v_mov_b32 v43, v42
    v_mov_b32 v45, v44
    s_nop 1
    v_permlane16_swap_b32 v42, v43
    v_permlane16_swap_b32 v44, v45
    s_nop 1
    v_add_f32 v42, v42, v43
    v_add_f32 v44, v44, v45
    s_nop 0
    v_mov_b32 v43, v42
    v_mov_b32 v45, v44
    s_nop 1
    v_permlane32_swap_b32 v42, v43
    v_permlane32_swap_b32 v44, v45
    s_nop 1
    v_add_f32 v42, v42, v43
    v_add_f32 v44, v44, v45
    s_nop 0
    v_cvt_pk_bf16_f32 v42, v42, v44
    s_mov_b64 exec, 0xff
    buffer_store_dword v42, v111, {sOUT}, 0 offen
    s_mov_b64 exec, -1
    s_cmp_eq_u32 s2, 0
    s_cbranch_scc0 L_fin
    v_mov_b32 v1, 0
    v_mov_b32 v43, {TAG}
    s_mov_b64 exec, 1
    global_store_dword v1, v43, {WSB} sc1
    s_mov_b64 exec, -1
    """)
    g.lab("L_fin")
    if fixed:
        g.lab("L_hold")
        g("s_memrealtime s[90:91]")
        g("s_waitcnt lgkmcnt(0)")
        g("s_sub_u32 s92, s90, s94")
        g(f"s_cmp_lt_u32 s92, {fixed}")
        g("s_cbranch_scc1 L_hold")
    if ts:
        g("s_memrealtime s[90:91]")
        g("s_waitcnt lgkmcnt(0)")
    if dbgts:
        g(f"s_cmp_eq_u32 {WAVE}, 0")
        g("s_cbranch_scc1 L_dbg")
        g(f"s_cmp_eq_u32 {WAVE}, 9")
        g("s_cbranch_scc1 L_dbg")
        g(f"s_cmp_eq_u32 {WAVE}, 15")
        g("s_cbranch_scc0 L_end")
        g.lab("L_dbg")
        for _ in range(8):
            g("s_sleep 127")
        g("s_mov_b64 exec, 1")
        g("v_mov_b32 v1, 0")
        g("s_not_b32 s92, s64")
        g("v_mov_b32 v2, s92")
        g("global_atomic_umax v1, v2, s[16:17]")
        for k in range(1, 11):
            g(f"v_mov_b32 v2, s{64+2*k}")
            g(f"global_atomic_umax v1, v2, s[16:17] offset:{4*k}")
        g("v_mov_b32 v2, s90")
        g("global_atomic_umax v1, v2, s[16:17] offset:44")
        g("v_mov_b32 v2, s64")
        g("global_atomic_umax v1, v2, s[16:17] offset:48")
    elif ts:
        g(f"""
        s_lshl_b32 {T0}, s2, 4
        s_add_u32 {T0}, {T0}, {WAVE}
        s_lshl_b32 {T0}, {T0}, 7
        s_add_u32 {T0}, {T0}, {WS_TS}
        v_mov_b32 v1, {T0}
        s_mov_b64 exec, 1
        """)
        for k in range(13):
            g(f"v_mov_b32 v2, s{64+2*k}")
            g(f"global_store_dword v1, v2, {WSB} offset:{4*k}")
        g("v_mov_b32 v2, s90")
        g(f"global_store_dword v1, v2, {WSB} offset:60")
        g("v_mov_b32 v2, s92")
        g(f"global_store_dword v1, v2, {WSB} offset:56")
        g("v_mov_b32 v2, s94")
        g(f"global_store_dword v1, v2, {WSB} offset:52")
        g("v_mov_b32 v2, s96")
        g(f"global_store_dword v1, v2, {WSB} offset:64")
        g("v_mov_b32 v2, s98")
        g(f"global_store_dword v1, v2, {WSB} offset:68")
    g.lab("L_end")
    g("s_endpgm")
    tail_txt = f"""
.section .rodata,"a"
.p2align 6
.amdhsa_kernel {NAME}
  .amdhsa_next_free_vgpr 128
  .amdhsa_next_free_sgpr 100
  .amdhsa_accum_offset 128
  .amdhsa_group_segment_fixed_size 0
  .amdhsa_kernarg_size 64
  .amdhsa_user_sgpr_count 2
  .amdhsa_user_sgpr_kernarg_segment_ptr 1
  .amdhsa_system_sgpr_workgroup_id_x 1
.end_amdhsa_kernel
"""
    return "\n".join(hdr) + "\n" + "\n".join(g.L) + tail_txt

if __name__ == "__main__":
    import argparse
    ap = argparse.ArgumentParser()
    ap.add_argument("-o", default="k.s")
    ap.add_argument("--depth", type=int, default=2)
    ap.add_argument("--nq", type=int, default=10)
    ap.add_argument("--depth2", type=int, default=0)
    ap.add_argument("--first", type=int, default=1)
    ap.add_argument("--ts", action="store_true")
    ap.add_argument("--mimic", action="store_true")
    ap.add_argument("--spin", type=int, default=100000)
    ap.add_argument("--defw", action="store_true")
    ap.add_argument("--dbgts", action="store_true")
    ap.add_argument("--fixed", type=int, default=0)
    ap.add_argument("--swapbs", action="store_true")
    ap.add_argument("--w0early", action="store_true")
    ap.add_argument("--nowarmwo", action="store_true")
    ap.add_argument("--wopos", type=int, default=16)
    ap.add_argument("--hkvxor", type=int, default=0)
    ap.add_argument("--hkvmap", type=int, default=0)
    ap.add_argument("--nocpf", action="store_true")
    ap.add_argument("--nopret", action="store_true")
    ap.add_argument("--nopretq", action="store_true")
    ap.add_argument("--pretmod", default="")
    a = ap.parse_args()
    open(a.o, "w").write(gen(depth=a.depth, nq=a.nq, depth2=a.depth2, first=a.first, ts=a.ts, mimic=a.mimic, spin=a.spin, nt_w=not a.defw,
                             dbgts=a.dbgts, fixed=a.fixed, swapbs=a.swapbs, w0late=not a.w0early, warm_wo=not a.nowarmwo, wopos=a.wopos, hkvxor=a.hkvxor, hkvmap=a.hkvmap, cpf=not a.nocpf, pret=not a.nopret, pretq=not a.nopretq, pretmod=a.pretmod))
```

```python
import sys, struct
NAME = "standalone__sliding_block_cached__decode_kernel"

ML    = 0
STATS = 64
MW    = 192
QIMG  = 256
PIMG  = 768
AIMG  = 2816
MARR  = 5120
XIMG  = 6144
W     = 10752
KIMG  = 29184
PART  = KIMG
LDS_BYTES = KIMG + 131072
WS_OS = 4096
WS_O  = 65536
WS_Q  = 589824
WS_P  = 1114112
WS_TS = 4*1024*1024

SCALE_LOG2E = 0.08838834764831845 * 1.4426950408889634

def f2u(x):
    return struct.unpack("<I", struct.pack("<f", x))[0]

class G:
    def __init__(s):
        s.L = []
    def __call__(s, t):
        for line in t.strip().split("\n"):
            s.L.append("    " + line.strip())
    def lab(s, t):
        s.L.append(t + ":")

def gen(depth=2, nq=10, depth2=0, first=1, swapbs=False, spin=100000, ts=False, mimic=False, nt_w=True, warm_out=True,
        dbgts=False, fixed=0, w0late=True, warm_wo=True, wopos=16, hkvxor=0, hkvmap=0, cpf=True, pret=True, pretq=False, pretmod='', lite=False, kvmod=' nt', cpfn=256):
    ts = ts or dbgts
    g = G()
    hdr = [f"; @launch grid=(256,1,1) block=(1024,1,1) lds={LDS_BYTES}",
           '.amdgcn_target "amdgcn-amd-amdhsa--gfx950"', ".text", f".globl {NAME}", ".p2align 8",
           f".type {NAME},@function", f"{NAME}:"]
    NT = kvmod
    NTW = " nt" if nt_w else ""
    sK, sV, sWQ, sWO, sX, sOUT = "s[20:23]", "s[24:27]", "s[28:31]", "s[32:35]", "s[36:39]", "s[40:43]"
    WSB = "s[18:19]"
    HKV, J, B, S = "s44", "s45", "s46", "s47"
    KVB, ROT, TAG = "s48", "s49", "s50"
    T0, T1, T2, T3 = "s51", "s52", "s53", "s54"
    KM0 = "s55"
    WAVE = "s3"
    CS = 1.4426950408889634 if mimic else SCALE_LOG2E
    def stamp(k):
        if lite and k == 0:
            g("s_memrealtime s[64:65]")
        if ts:
            g(f"s_memrealtime s[{64+2*k}:{65+2*k}]")
    def srd(dst, lo, hi, size):
        a = int(dst[2:dst.index(":")])
        g(f"""
        s_mov_b32 s{a}, {lo}
        s_and_b32 s{a+1}, {hi}, 0xffff
        s_mov_b32 s{a+2}, {size}
        s_mov_b32 s{a+3}, 0x20000
        """)
    g("s_cmp_ge_u32 s2, 256")
    g("s_cbranch_scc1 L_end")
    if ts:
        for k in range(1, 15):
            g(f"s_mov_b32 s{64+2*k}, 0")
    stamp(0)
    if fixed:
        g("s_memrealtime s[94:95]")
    g("s_load_dwordx16 s[4:19], s[0:1], 0")
    g(f"""
    v_lshrrev_b32 v1, 6, v0
    v_and_b32 v0, 63, v0
    v_readfirstlane_b32 {WAVE}, v1
    {"s_and_b32 " + HKV + ", s2, 15" if hkvmap == 0 else "s_and_b32 " + HKV + ", s2, 7"}
    {"s_nop 0" if hkvmap == 0 else "s_lshl_b32 " + HKV + ", " + HKV + ", 1"}
    {"s_nop 0" if hkvmap == 0 else "s_bfe_u32 " + T1 + ", s2, 0x10003"}
    {"s_nop 0" if hkvmap == 0 else "s_or_b32 " + HKV + ", " + HKV + ", " + T1}
    s_xor_b32 {HKV}, {HKV}, {hkvxor}
    s_lshr_b32 {T0}, s2, 4
    s_lshr_b32 {B if not swapbs else S}, {T0}, 2
    s_and_b32 {S if not swapbs else B}, {T0}, 3
    s_lshl_b32 {J}, {B}, 2
    s_add_u32 {J}, {J}, {S}
    v_lshrrev_b32 v1, 3, v0
    v_lshlrev_b32 v1, 13, v1
    v_and_b32 v9, 7, v0
    v_lshl_add_u32 v9, v9, 4, v1
    v_add_u32 v127, 36, v0
    v_lshrrev_b32 v1, 3, v127
    v_lshlrev_b32 v1, 13, v1
    v_and_b32 v127, 7, v127
    v_lshl_add_u32 v127, v127, 4, v1
    v_lshlrev_b32 v4, 4, v0
    """)
    g(f"""
    s_lshr_b32 {T2}, {J}, 2
    s_mul_i32 {T0}, {T2}, 144
    s_mul_i32 {T1}, {WAVE}, 9
    s_add_u32 {T0}, {T0}, {T1}
    s_lshl_b32 {T0}, {T0}, 13
    s_lshl_b32 {T1}, {HKV}, 9
    s_add_u32 {T0}, {T0}, {T1}
    s_and_b32 {T1}, {J}, 3
    s_lshl_b32 {T1}, {T1}, 7
    s_add_u32 {T0}, {T0}, {T1}
    s_mul_i32 {T1}, {WAVE}, 1152
    s_add_u32 m0, {T1}, {W}
    s_mul_i32 {T2}, {T2}, 288
    s_mul_i32 {T1}, {WAVE}, 1152
    s_add_u32 {T2}, {T2}, {T1}
    s_mul_i32 {T3}, {WAVE}, 288
    s_waitcnt lgkmcnt(0)
    """)
    if ts:
        g("s_memrealtime s[96:97]")
    srd(sWQ, "s10", "s11", 576*8192)
    g(f"""
    s_mov_b32 exec_lo, -1
    s_mov_b32 exec_hi, 0xf
    buffer_load_dwordx4 v9, {sWQ}, {T0} offen{NTW} lds
    s_add_u32 m0, m0, 576
    s_mov_b32 s36, s4
    s_and_b32 s37, s5, 0xffff
    buffer_load_dwordx4 v127, {sWQ}, {T0} offen{NTW} lds
    s_mov_b32 s38, 4608
    s_mov_b32 s39, 0x20000
    s_mov_b64 exec, -1
    s_cmp_lt_u32 {WAVE}, 4
    s_cbranch_scc0 L_nox
    s_add_u32 m0, {T3}, {XIMG}
    s_mov_b32 exec_lo, 0x3ffff
    s_mov_b32 exec_hi, 0
    buffer_load_dwordx4 v4, {sX}, {T2} offen lds
    s_mov_b64 exec, -1
    """)
    g.lab("L_nox")
    g(f"""
    v_mov_b32 v110, 0
    v_mov_b32 v111, 0
    v_mov_b32 v112, 0
    v_mov_b32 v113, 0
    s_cmp_eq_u32 {WAVE}, 0
    s_cbranch_scc0 L_i1
    global_load_dword v126, v110, {WSB}
    """)
    g.lab("L_i1")
    g(f"""
    s_cmp_eq_u32 {WAVE}, 1
    s_cbranch_scc0 L_i3
    ds_write_b128 v112, v[110:113] offset:{ML}
    ds_write_b128 v112, v[110:113] offset:{ML+16}
    s_waitcnt lgkmcnt(0)
    """)
    g.lab("L_i3")
    g(f"""
    s_lshl_b32 {T0}, {B}, 4
    s_add_u32 {T0}, {T0}, {HKV}
    s_lshl_b32 {KVB}, {T0}, 21
    s_lshl_b32 {T0}, {S}, 17
    s_add_u32 {KVB}, {KVB}, {T0}
    s_add_u32 {KVB}, {KVB}, 0x180000
    s_lshl_b32 {T0}, {WAVE}, 13
    s_add_u32 {KVB}, {KVB}, {T0}
    s_add_u32 {KM0}, {T0}, {KIMG}
    s_lshr_b32 {ROT}, s2, 3
    s_add_u32 {ROT}, {ROT}, {WAVE}
    v_and_b32 v2, 15, v0
    v_lshrrev_b32 v3, 4, v0
    v_xor_b32 v1, v2, v3
    v_lshlrev_b32 v1, 4, v1
    v_lshl_add_u32 v5, v3, 8, v1
    v_xor_b32 v6, 64, v5
    v_xor_b32 v7, 0x80, v5
    v_xor_b32 v8, 0xc0, v5
    """)
    srd(sK, "s6", "s7", 0x8000000)
    srd(sV, "s8", "s9", 0x8000000)
    if ts:
        g("s_memrealtime s[98:99]")
    g("s_barrier")
    VREG = 10
    def stream_load(n):
        m = n & 7
        g(f"""
        s_add_u32 {T0}, {ROT}, {m}
        s_and_b32 {T0}, {T0}, 7
        s_lshl_b32 {T0}, {T0}, 10
        s_add_u32 {T0}, {T0}, {KVB}
        """)
        if n < 8:
            g(f"""
            s_add_u32 m0, {KM0}, {m*1024}
            s_nop 0
            buffer_load_dwordx4 v{5 + (m & 3)}, {sK}, {T0} offen{NT} lds
            """)
        else:
            r = VREG + 4*m
            g(f"buffer_load_dwordx4 v[{r}:{r+3}], v4, {sV}, {T0} offen{NT}")
    def masked_poll(lbl, addr_lo, addr_hi, base, cnt_reg, ts_slot=None, first_round_extra=None):
        PEND = "s62"
        g(f"s_mov_b32 {PEND}, 0xff")
        g(f"s_mov_b32 {cnt_reg}, 0")
        if ts and lbl == "L_pp":
            g("s_memrealtime s[96:97]")
        g.lab(f"{lbl}_round")
        for n in range(8):
            g(f"s_bitcmp1_b32 {PEND}, {n}")
            g(f"s_cbranch_scc0 {lbl}_s{n}")
            g(f"global_load_dwordx4 v[{base+4*n}:{base+4*n+3}], v{addr_lo if n < 4 else addr_hi}, {WSB} offset:{(n & 3)*1024} sc1")
            g.lab(f"{lbl}_s{n}")
        g(f"s_add_u32 {cnt_reg}, {cnt_reg}, 1")
        if ts and lbl == "L_pp":
            g(f"s_cmp_eq_u32 {cnt_reg}, 1")
            g("s_cbranch_scc0 L_pp_n1")
            g("s_memrealtime s[98:99]")
            g.lab("L_pp_n1")
        g("s_waitcnt vmcnt(0)")
        if ts and lbl == "L_pp":
            g(f"s_cmp_eq_u32 {cnt_reg}, 1")
            g("s_cbranch_scc0 L_pp_n2")
            g("s_memrealtime s[92:93]")
            g.lab("L_pp_n2")
        for n in range(8):
            g(f"s_bitcmp1_b32 {PEND}, {n}")
            g(f"s_cbranch_scc0 {lbl}_c{n}")
            g(f"v_cmp_eq_u32 vcc, {TAG}, v{base+4*n+1}")
            g(f"v_cmp_eq_u32 s[58:59], {TAG}, v{base+4*n+3}")
            g("s_nop 1")
            g("s_and_b64 vcc, vcc, s[58:59]")
            g("s_cmp_eq_u64 vcc, -1")
            g(f"s_cbranch_scc0 {lbl}_c{n}")
            g(f"s_bitset0_b32 {PEND}, {n}")
            g.lab(f"{lbl}_c{n}")
        g(f"s_cmp_eq_u32 {PEND}, 0")
        g(f"s_cbranch_scc1 {lbl}_done")
        g(f"s_cmp_lt_u32 {cnt_reg}, {spin}")
        g(f"s_cbranch_scc1 {lbl}_round")
        g.lab(f"{lbl}_done")
    def masked_poll2(lbl, addr_lo, addr_hi, base, cnt_reg, tagw=2):
        PEND = "s62"
        for n in range(8):
            g(f"global_load_dwordx4 v[{base+4*n}:{base+4*n+3}], v{addr_lo if n < 4 else addr_hi}, {WSB} offset:{(n & 3)*1024} sc1")
        g(f"s_mov_b32 {PEND}, 0")
        g(f"s_mov_b32 {cnt_reg}, 1")
        for n in range(8):
            g(f"s_waitcnt vmcnt({7-n})")
            g(f"v_cmp_ne_u32 vcc, {TAG}, v{base+4*n+tagw}")
            g("s_nop 0")
            g("s_cmp_lg_u64 vcc, 0")
            g(f"s_cselect_b32 {T0}, {1 << n}, 0")
            g(f"s_or_b32 {PEND}, {PEND}, {T0}")
        g(f"s_cmp_eq_u32 {PEND}, 0")
        g(f"s_cbranch_scc1 {lbl}_done")
        g.lab(f"{lbl}_round")
        for n in range(8):
            g(f"s_bitcmp1_b32 {PEND}, {n}")
            g(f"s_cbranch_scc0 {lbl}_s{n}")
            g(f"global_load_dwordx4 v[{base+4*n}:{base+4*n+3}], v{addr_lo if n < 4 else addr_hi}, {WSB} offset:{(n & 3)*1024} sc1")
            g.lab(f"{lbl}_s{n}")
        g(f"s_add_u32 {cnt_reg}, {cnt_reg}, 1")
        g("s_waitcnt vmcnt(0)")
        for n in range(8):
            g(f"s_bitcmp1_b32 {PEND}, {n}")
            g(f"s_cbranch_scc0 {lbl}_c{n}")
            g(f"v_cmp_ne_u32 vcc, {TAG}, v{base+4*n+tagw}")
            g("s_nop 0")
            g("s_cmp_lg_u64 vcc, 0")
            g(f"s_cbranch_scc1 {lbl}_c{n}")
            g(f"s_bitset0_b32 {PEND}, {n}")
            g.lab(f"{lbl}_c{n}")
        g(f"s_cmp_eq_u32 {PEND}, 0")
        g(f"s_cbranch_scc1 {lbl}_done")
        g(f"s_cmp_lt_u32 {cnt_reg}, {spin}")
        g(f"s_cbranch_scc1 {lbl}_round")
        g.lab(f"{lbl}_done")
    def lds_spin(lbl, off, thresh, tmpv, zero_v):
        g(f"s_mov_b32 {T2}, 0")
        g.lab(lbl)
        g(f"""
        ds_read_b32 v{tmpv}, v{zero_v} offset:{off}
        s_add_u32 {T2}, {T2}, 1
        s_waitcnt lgkmcnt(0)
        v_readfirstlane_b32 {T0}, v{tmpv}
        s_cmp_ge_u32 {T2}, {spin*8}
        s_cbranch_scc1 {lbl}_ok
        s_cmp_lt_u32 {T0}, {thresh}
        s_cbranch_scc1 {lbl}
        """)
        g.lab(f"{lbl}_ok")
    uniq = [0]
    def pre_qk():
        g(f"""
        v_xor_b32 v1, v2, v3
        v_lshlrev_b32 v1, 4, v1
        v_lshl_add_u32 v1, v2, 8, v1
        v_add_u32 v110, {KM0}, v1
        v_xor_b32 v111, 64, v110
        v_xor_b32 v112, 0x80, v110
        v_xor_b32 v113, 0xc0, v110
        """)
        for t in range(2):
            for j in range(4):
                r = 42 + (t*4 + j)*4
                g(f"ds_read_b128 v[{r}:{r+3}], v{110+j} offset:{t*4096}")
        g("""
        v_and_b32 v1, 1, v0
        v_cmp_eq_u32 vcc, 1, v1
        v_mov_b32 v114, 0x0c0c0100
        v_mov_b32 v115, 0x01000c0c
        v_mov_b32 v116, 0x0c0c0302
        v_mov_b32 v117, 0x03020c0c
        v_cndmask_b32 v114, v114, v115, vcc
        v_cndmask_b32 v116, v116, v117, vcc
        v_mov_b32 v115, 0x0c0c0c0c
        v_bfe_u32 v1, v0, 1, 2
        """)
        for r in range(4):
            g(f"v_cmp_eq_u32 vcc, {r}, v1")
            g(f"v_mov_b32 v{90+2*r}, 0")
            g(f"v_mov_b32 v{91+2*r}, 0")
            g(f"v_cndmask_b32 v{102+r}, v115, v114, vcc")
            g(f"v_cndmask_b32 v{106+r}, v115, v116, vcc")
        g(f"""
        v_and_b32 v1, 1, v0
        v_lshlrev_b32 v1, 8, v1
        v_lshl_add_u32 v120, v3, 4, v1
        v_lshrrev_b32 v1, 5, v0
        v_lshlrev_b32 v121, 2, v1
        v_and_b32 v122, 3, v0
        v_lshlrev_b32 v122, 4, v122
        v_bfe_u32 v123, v0, 2, 3
        v_lshl_add_u32 v122, v123, 1, v122
        v_lshl_add_u32 v122, v1, 6, v122
        s_lshl_b32 {T1}, {WAVE}, 7
        s_add_u32 {T1}, {T1}, {PIMG}
        v_add_u32 v122, {T1}, v122
        v_lshrrev_b32 v123, 3, v2
        v_lshlrev_b32 v123, 6, v123
        v_lshl_add_u32 v123, v3, 4, v123
        v_add_u32 v123, {T1}, v123
        v_mov_b32 v98, 0
        v_mov_b32 v99, 0
        v_mov_b32 v100, 0
        v_mov_b32 v101, 0
        v_cmp_le_u32 vcc, 18, v0
        v_mov_b32 v1, 0
        v_mov_b32 v124, {1152 - 18*16}
        v_cndmask_b32 v1, v1, v124, vcc
        v_add_u32 v124, v1, v4
        """)
        if pret:
            u = uniq[0]; uniq[0] += 1
            g(f"""
            s_cmp_lt_u32 {WAVE}, 9
            s_cbranch_scc0 L_np1_{u}
            s_mul_i32 {T0}, {S}, {4*9*8192}
            s_lshl_b32 {T1}, {WAVE}, 13
            s_add_u32 {T0}, {T0}, {T1}
            s_lshl_b32 {T1}, {HKV}, 2
            s_add_u32 {T1}, {T1}, {B}
            s_lshl_b32 {T1}, {T1}, 7
            s_add_u32 {T0}, {T0}, {T1}
            s_add_u32 {T0}, {T0}, {WS_P}
            v_mul_u32_u24 v116, {9*8192}, v0
            v_add_u32 v116, {T0}, v116
            s_mov_b64 exec, 0xf
            global_load_dword v9, v116, {WSB} {pretmod}
            s_mov_b64 exec, -1
            s_branch L_np2_{u}
            """)
            g.lab(f"L_np1_{u}")
            g(f"""
            s_cmp_eq_u32 {WAVE}, 9
            s_cbranch_scc0 L_np3_{u}
            s_lshl_b32 {T0}, {HKV}, 4
            s_add_u32 {T0}, {T0}, {J}
            s_lshl_b32 {T1}, {T0}, 10
            s_add_u32 {T1}, {T1}, {WS_O}
            v_lshlrev_b32 v116, 7, v0
            v_add_u32 v116, {T1}, v116
            s_mov_b64 exec, 0xff
            global_load_dword v9, v116, {WSB} {pretmod}
            s_mov_b64 exec, -1
            s_branch L_np2_{u}
            """)
            g.lab(f"L_np3_{u}")
            g(f"""
            s_cmp_eq_u32 {WAVE}, 15
            s_cbranch_scc0 L_np2_{u}
            s_cmp_lt_u32 s2, 144
            s_cbranch_scc0 L_np2_{u}
            s_and_b32 {T0}, s2, 3
            s_bfe_u32 {T1}, s2, 0x20002
            s_lshr_b32 {T2}, s2, 4
            s_mul_i32 {T1}, {T1}, 1152
            s_mul_i32 {T0}, {T0}, 288
            s_add_u32 {T1}, {T1}, {T0}
            s_lshl_b32 {T2}, {T2}, 5
            s_add_u32 {T1}, {T1}, {T2}
            v_mov_b32 v116, {T1}
            s_mov_b64 exec, 1
            buffer_load_dword v9, v116, {sOUT}, 0 offen
            s_mov_b64 exec, -1
            """)
            g.lab(f"L_np2_{u}")
    if cpf:
        g(f"""
        s_cmp_eq_u32 {WAVE}, 4
        s_cbranch_scc0 L_nocpf
        s_cmp_lt_u32 s2, {cpfn}
        s_cbranch_scc0 L_nocpf
        s_getpc_b64 s[56:57]
        """)
        g.lab("L_pc")
        g(f"""
        v_lshlrev_b32 v1, 7, v0
        v_min_u32 v110, L_end-L_pc, v1
        global_load_dword v112, v110, s[56:57]
        """)
        if ts:
            g(f"""
            v_add_u32 v1, 8192, v1
            v_min_u32 v111, L_end-L_pc, v1
            global_load_dword v113, v111, s[56:57]
            """)
        g.lab("L_nocpf")
    if pret and pretq:
        g(f"""
        s_cmp_eq_u32 {WAVE}, 5
        s_cbranch_scc0 L_nopq
        s_lshl_b32 {T0}, {HKV}, 15
        s_lshr_b32 {T1}, {J}, 2
        s_lshl_b32 {T1}, {T1}, 11
        s_add_u32 {T0}, {T0}, {T1}
        s_and_b32 {T1}, {J}, 3
        s_lshl_b32 {T1}, {T1}, 9
        s_add_u32 {T0}, {T0}, {T1}
        s_add_u32 {T0}, {T0}, {WS_Q}
        v_bfe_u32 v1, v0, 2, 2
        v_lshlrev_b32 v110, 13, v1
        v_and_b32 v1, 3, v0
        v_lshl_add_u32 v110, v1, 7, v110
        v_add_u32 v110, {T0}, v110
        s_mov_b64 exec, 0xffff
        global_load_dword v9, v110, {WSB} {pretmod}
        s_mov_b64 exec, -1
        """)
        g.lab("L_nopq")
    g(f"s_cmp_eq_u32 {WAVE}, 0")
    g("s_cbranch_scc1 L_w0")
    for n in range(first):
        stream_load(n)
    srd(sWO, "s12", "s13", 4096*1152)
    srd(sOUT, "s14", "s15", 4608)
    if warm_wo:
        g(f"""
        s_cmp_eq_u32 {WAVE}, 3
        s_cbranch_scc0 L_nowarm
        s_lshl_b32 {T0}, {HKV}, 8
        s_lshl_b32 {T1}, {B}, 6
        s_add_u32 {T0}, {T0}, {T1}
        s_mul_i32 {T0}, {T0}, 1152
        v_and_b32 v1, 1, v0
        v_mul_u32_u24 v1, {63*1152}, v1
        buffer_load_dword v127, v1, {sWO}, {T0} offen
        v_mov_b32 v1, {WS_P + 1100000}
        global_load_dword v126, v1, {WSB}
        s_waitcnt vmcnt({first+2})
        s_branch L_warmed
        """)
        g.lab("L_nowarm")
    g(f"s_waitcnt vmcnt({first})")
    if warm_wo:
        g.lab("L_warmed")
    g(f"""
    v_mov_b32 v1, 0
    v_mov_b32 v110, 1
    s_mov_b64 exec, 1
    ds_add_u32 v1, v110 offset:{ML+20}
    s_mov_b64 exec, -1
    """)
    stamp(1)
    for n in range(first, nq + 1):
        if n >= depth:
            g(f"s_waitcnt vmcnt({depth-1})")
        stream_load(n)
    stamp(2)
    g(f"s_waitcnt vmcnt({nq - 7})")
    pre_qk()
    g("s_branch L_bar2")
    g.lab("L_w0")
    nfront = first if w0late else nq + 1
    for n in range(nfront):
        stream_load(n)
    srd(sWO, "s12", "s13", 4096*1152)
    srd(sOUT, "s14", "s15", 4608)
    g(f"""
    v_and_b32 v1, 3, v0
    v_mul_u32_u24 v1, 288, v1
    v_lshl_add_u32 v42, v3, 4, v1
    v_add_u32 v42, {XIMG}, v42
    v_lshl_add_u32 v43, v3, 3, v1
    v_add_u32 v43, {XIMG+256}, v43
    v_lshrrev_b32 v1, 2, v2
    v_lshl_add_u32 v120, v3, 3, v1
    v_lshlrev_b32 v120, 7, v120
    v_lshl_add_u32 v121, v3, 2, v1
    v_lshlrev_b32 v121, 7, v121
    v_and_b32 v1, 3, v0
    v_lshl_add_u32 v120, v1, 3, v120
    v_lshl_add_u32 v121, v1, 3, v121
    v_add_u32 v120, {W}, v120
    v_add_u32 v121, {W + 128*128}, v121
    """)
    for r in range(44, 60):
        g(f"v_mov_b32 v{r}, 0")
    g(f"""
    v_mov_b32 v1, 0
    s_mov_b32 {T2}, 0
    s_waitcnt vmcnt({nfront})
    v_readfirstlane_b32 {TAG}, v126
    s_mul_i32 {TAG}, {TAG}, 1664525
    s_add_u32 {TAG}, {TAG}, 1013904223
    """)
    g.lab("L_cnt")
    g(f"""
    ds_read_b32 v110, v1 offset:{ML+20}
    s_add_u32 {T2}, {T2}, 1
    s_waitcnt lgkmcnt(0)
    v_readfirstlane_b32 {T0}, v110
    s_cmp_ge_u32 {T2}, {spin*8}
    s_cbranch_scc1 L_cntok
    s_cmp_lt_u32 {T0}, 15
    s_cbranch_scc1 L_cnt
    """)
    g.lab("L_cntok")
    stamp(1)
    for kk in range(4):
        g(f"ds_read_b128 v[{60+4*kk}:{63+4*kk}], v42 offset:{kk*64}")
    g("ds_read_b64 v[76:77], v43")
    def breads(kk, buf):
        base = 78 + buf*16
        for t in range(4):
            g(f"ds_read_b64_tr_b16 v[{base+4*t}:{base+4*t+1}], v120 offset:{kk*4096 + t*32}")
            g(f"ds_read_b64_tr_b16 v[{base+4*t+2}:{base+4*t+3}], v120 offset:{kk*4096 + t*32 + 512}")
    breads(0, 0)
    for kk in range(4):
        if kk < 3:
            g("s_waitcnt lgkmcnt(0)")
            breads(kk + 1, (kk + 1) & 1)
        else:
            g("s_waitcnt lgkmcnt(0)")
            for t in range(4):
                g(f"ds_read_b64_tr_b16 v[{78+2*t}:{79+2*t}], v121 offset:{t*32}")
        base = 78 + (kk & 1)*16
        for t in range(4):
            g(f"v_mfma_f32_16x16x32_bf16 v[{44+4*t}:{47+4*t}], v[{60+4*kk}:{63+4*kk}], v[{base+4*t}:{base+4*t+3}], v[{44+4*t}:{47+4*t}]")
    g("s_waitcnt lgkmcnt(0)")
    for t in range(4):
        g(f"v_mfma_f32_16x16x16_bf16 v[{44+4*t}:{47+4*t}], v[76:77], v[{78+2*t}:{79+2*t}], v[{44+4*t}:{47+4*t}]")
    g(f"""
    s_mov_b32 s56, 0xffff0000
    s_mov_b32 s57, 0
    s_mov_b32 s58, 0
    s_mov_b32 s59, 0xffff
    s_mov_b32 s60, 0
    s_mov_b32 s61, 0xffff0000
    s_lshl_b32 {T0}, {HKV}, 15
    s_lshr_b32 {T1}, {J}, 2
    s_lshl_b32 {T1}, {T1}, 11
    s_add_u32 {T0}, {T0}, {T1}
    s_and_b32 {T1}, {J}, 3
    s_lshl_b32 {T1}, {T1}, 9
    s_add_u32 {T0}, {T0}, {T1}
    s_add_u32 {T0}, {T0}, {WS_Q}
    v_lshlrev_b32 v78, 13, v3
    v_lshl_add_u32 v78, v2, 3, v78
    v_add_u32 v78, {T0}, v78
    v_mov_b32 v61, {TAG}
    v_mov_b32 v63, {TAG}
    v_mov_b32 v65, {TAG}
    v_mov_b32 v67, {TAG}
    """)
    for t in range(4):
        g(f"v_cndmask_b32 v{60+2*t}, v{44+4*t}, v{45+4*t}, s[56:57]")
        g(f"v_cndmask_b32 v{60+2*t}, v{60+2*t}, v{46+4*t}, s[58:59]")
        g(f"v_cndmask_b32 v{60+2*t}, v{60+2*t}, v{47+4*t}, s[60:61]")
        g(f"global_store_dwordx2 v78, v[{60+2*t}:{61+2*t}], {WSB} offset:{t*128} sc1")
    stamp(2)
    for n in range(nfront, nq + 1):
        stream_load(n)
    if warm_out:
        g(f"buffer_load_dword v125, v4, {sOUT}, 0 offen")
    g(f"""
    s_lshl_b32 {T0}, {HKV}, 15
    s_lshl_b32 {T1}, {B}, 13
    s_add_u32 {T0}, {T0}, {T1}
    s_add_u32 {T0}, {T0}, {WS_Q}
    v_add_u32 v110, {T0}, v4
    v_add_u32 v111, 4096, v110
    s_mov_b32 {T2}, 0
    """)
    masked_poll("L_qp", 110, 111, 44, T2)
    if ts: g(f"s_mov_b32 s86, {T2}")
    for hf in range(2):
        a0 = 44 + 4*hf
        for rq in range(1, 4):
            n = 2*rq + hf
            g(f"v_add_f32 v{a0}, v{a0}, v{44+4*n}")
            g(f"v_add_f32 v{a0+2}, v{a0+2}, v{46+4*n}")
    g(f"""
    v_cvt_pk_bf16_f32 v44, v44, v46
    v_cvt_pk_bf16_f32 v48, v48, v50
    v_lshlrev_b32 v1, 2, v0
    ds_write_b32 v1, v44 offset:{QIMG}
    ds_write_b32 v1, v48 offset:{QIMG+256}
    v_mov_b32 v1, 0
    v_mov_b32 v57, {TAG}
    v_mov_b32 v58, 1
    ds_write_b32 v1, v57 offset:{ML+16}
    ds_write_b32 v1, v58 offset:{ML+24}
    """)
    stamp(3)
    pre_qk()
    g("s_branch L_qready")
    g.lab("L_bar2")
    g("v_mov_b32 v1, 0")
    lds_spin("L_qflag", ML+24, 1, 126, 1)
    g.lab("L_qready")
    stamp(4)
    g(f"""
    ds_read_b128 v[74:77], v120 offset:{QIMG}
    ds_read_b128 v[78:81], v120 offset:{QIMG+64}
    ds_read_b128 v[82:85], v120 offset:{QIMG+128}
    ds_read_b128 v[86:89], v120 offset:{QIMG+192}
    v_mov_b32 v1, 0
    ds_read_b32 v126, v1 offset:{ML+16}
    """)
    g("s_waitcnt lgkmcnt(1)")
    for j in range(4):
        g(f"v_mfma_f32_16x16x32_bf16 v[90:93], v[{74+4*j}:{77+4*j}], v[{42+4*j}:{45+4*j}], v[90:93]")
        g(f"v_mfma_f32_16x16x32_bf16 v[94:97], v[{74+4*j}:{77+4*j}], v[{58+4*j}:{61+4*j}], v[94:97]")
    g(f"""
    s_mov_b32 s56, 0xffff0000
    s_mov_b32 s57, 0xffff0000
    s_mov_b32 s58, 0
    s_mov_b32 s59, -1
    s_mov_b32 {T3}, 0x{f2u(CS):08x}
    s_waitcnt lgkmcnt(0)
    v_readfirstlane_b32 {TAG}, v126
    s_nop 1
    v_cndmask_b32 v110, v90, v94, s[56:57]
    v_cndmask_b32 v111, v91, v95, s[56:57]
    v_cndmask_b32 v110, v110, v111, s[58:59]
    """)
    if mimic:
        g(f"""
        v_cvt_pk_bf16_f32 v110, v110, v110
        v_lshlrev_b32 v110, 16, v110
        v_mul_f32 v110, 0x{f2u(0.08838834764831845):08x}, v110
        v_cvt_pk_bf16_f32 v110, v110, v110
        v_lshlrev_b32 v110, 16, v110
        """)
    g(f"""
    s_nop 1
    v_max_f32_dpp v111, v110, v110 row_ror:8 row_mask:0xf bank_mask:0xf
    s_nop 1
    v_max_f32_dpp v111, v111, v111 row_ror:4 row_mask:0xf bank_mask:0xf
    s_nop 1
    v_max_f32_dpp v111, v111, v111 row_ror:2 row_mask:0xf bank_mask:0xf
    s_nop 1
    v_max_f32_dpp v111, v111, v111 row_ror:1 row_mask:0xf bank_mask:0xf
    s_nop 0
    v_mov_b32 v112, v111
    s_nop 1
    v_permlane16_swap_b32 v111, v112
    s_nop 1
    v_max_f32 v111, v111, v112
    s_lshl_b32 {T1}, {WAVE}, 2
    v_lshl_add_u32 v112, v121, 4, {T1}
    v_mov_b32 v114, 1
    v_mov_b32 v113, 0
    s_mov_b32 exec_lo, 1
    s_mov_b32 exec_hi, 1
    ds_write_b32 v112, v111 offset:{MARR}
    s_mov_b64 exec, 1
    ds_add_u32 v113, v114 offset:{ML+28}
    s_mov_b64 exec, -1
    v_mov_b32 v127, v111
    v_mul_f32 v115, {T3}, v111
    v_fma_f32 v110, v110, {T3}, -v115
    v_exp_f32 v110, v110
    s_nop 0
    v_cvt_pk_bf16_f32 v111, v110, v110
    ds_write_b16 v122, v111
    ds_read_b128 v[116:119], v123
    v_lshlrev_b32 v110, 16, v111
    s_nop 1
    v_add_f32_dpp v110, v110, v110 row_ror:8 row_mask:0xf bank_mask:0xf
    s_nop 1
    v_add_f32_dpp v110, v110, v110 row_ror:4 row_mask:0xf bank_mask:0xf
    s_nop 1
    v_add_f32_dpp v110, v110, v110 row_ror:2 row_mask:0xf bank_mask:0xf
    s_nop 1
    v_add_f32_dpp v110, v110, v110 row_ror:1 row_mask:0xf bank_mask:0xf
    s_nop 0
    v_mov_b32 v112, v110
    s_nop 1
    v_permlane16_swap_b32 v110, v112
    s_nop 1
    v_add_f32 v125, v110, v112
    s_waitcnt lgkmcnt(0)
    """)
    for n in range(8):
        src = 116 + (n >> 1)
        sel = 102 + (4 if (n & 1) else 0)
        for r in range(4):
            g(f"v_perm_b32 v{42+4*n+r}, v{src}, v{src}, v{sel+r}")
    stamp(5)
    def wo_issue():
        g(f"""
        s_lshl_b32 {T0}, {HKV}, 8
        s_lshl_b32 {T1}, {B}, 6
        s_add_u32 {T0}, {T0}, {T1}
        s_lshl_b32 {T1}, {WAVE}, 2
        s_add_u32 {T0}, {T0}, {T1}
        s_mul_i32 {T0}, {T0}, 1152
        s_mul_i32 {T1}, {S}, 288
        s_add_u32 {T0}, {T0}, {T1}
        s_mul_i32 {T1}, {WAVE}, {4*288}
        s_add_u32 m0, {T1}, {W}
        s_mov_b32 exec_lo, -1
        s_mov_b32 exec_hi, 0xf
        buffer_load_dwordx4 v124, {sWO}, {T0} offen{NTW} lds
        s_add_u32 {T0}, {T0}, {2*1152}
        s_add_u32 m0, m0, {2*288}
        s_nop 0
        buffer_load_dwordx4 v124, {sWO}, {T0} offen{NTW} lds
        s_mov_b64 exec, -1
        """)
    for n in range(nq + 1, 16):
        if n == wopos:
            wo_issue()
        if depth2:
            g(f"s_waitcnt vmcnt({depth2-1})")
        stream_load(n)
    if wopos >= 16:
        wo_issue()
    g(f"""
    s_lshl_b32 {T0}, {HKV}, 4
    s_add_u32 {T0}, {T0}, {J}
    s_lshl_b32 {T1}, {T0}, 10
    s_add_u32 {T1}, {T1}, {WS_O}
    s_sub_u32 {T2}, {WAVE}, 9
    s_lshl_b32 {T0}, {T2}, 9
    s_add_u32 {T1}, {T1}, {T0}
    v_bfe_u32 v1, v0, 3, 1
    v_lshlrev_b32 v104, 8, v1
    v_and_b32 v1, 7, v0
    v_lshl_add_u32 v104, v1, 5, v104
    v_bfe_u32 v105, v0, 4, 1
    v_lshl_add_u32 v104, v105, 4, v104
    v_add_u32 v104, {T1}, v104
    v_lshrrev_b32 v1, 5, v0
    v_lshlrev_b32 v103, 13, v1
    v_and_b32 v1, 31, v0
    v_lshl_add_u32 v103, v1, 4, v103
    s_add_u32 {T0}, {T0}, {PART}
    v_add_u32 v103, {T0}, v103
    s_lshl_b32 {T0}, {HKV}, 4
    s_lshl_b32 {T1}, {WAVE}, 2
    s_add_u32 {T0}, {T0}, {T1}
    v_add_u32 v112, {T0}, v3
    v_lshlrev_b32 v110, 10, v112
    v_lshl_add_u32 v110, v2, 4, v110
    s_lshl_b32 {T0}, {B}, 8
    s_add_u32 {T0}, {T0}, {WS_O}
    v_add_u32 v110, {T0}, v110
    v_add_u32 v113, {T1}, v3
    v_mul_u32_u24 v117, 144, v113
    v_lshl_add_u32 v117, v2, 3, v117
    v_lshlrev_b32 v118, 3, v113
    v_lshl_add_u32 v118, v2, 2, v118
    v_mul_u32_u24 v1, 144, v2
    v_lshl_add_u32 v119, v3, 4, v1
    v_lshrrev_b32 v120, 2, v2
    v_lshl_add_u32 v120, v3, 3, v120
    v_mul_u32_u24 v120, 288, v120
    v_and_b32 v1, 3, v0
    v_lshl_add_u32 v120, v1, 3, v120
    s_lshl_b32 {T0}, {WAVE}, 5
    s_add_u32 {T0}, {T0}, {W}
    v_add_u32 v120, {T0}, v120
    v_lshlrev_b32 v121, 5, v3
    s_mul_i32 {T0}, {S}, {4*9*8192}
    s_lshl_b32 {T1}, {WAVE}, 13
    s_add_u32 {T0}, {T0}, {T1}
    s_lshl_b32 {T1}, {HKV}, 2
    s_add_u32 {T1}, {T1}, {B}
    s_lshl_b32 {T1}, {T1}, 7
    s_add_u32 {T0}, {T0}, {T1}
    s_add_u32 {T0}, {T0}, {WS_P}
    v_mul_u32_u24 v1, {9*8192}, v3
    v_lshl_add_u32 v1, v2, 3, v1
    v_add_u32 v122, {T0}, v1
    """)
    g("v_mov_b32 v1, 0")
    lds_spin("L_cnt2", ML+28, 16, 126, 1)
    g(f"""
    v_lshrrev_b32 v1, 5, v0
    v_lshlrev_b32 v126, 2, v1
    v_lshlrev_b32 v1, 6, v1
    ds_read_b128 v[74:77], v1 offset:{MARR}
    ds_read_b128 v[78:81], v1 offset:{MARR+16}
    ds_read_b128 v[82:85], v1 offset:{MARR+32}
    ds_read_b128 v[86:89], v1 offset:{MARR+48}
    s_waitcnt lgkmcnt(0)
    v_max3_f32 v74, v74, v75, v76
    v_max3_f32 v77, v77, v78, v79
    v_max3_f32 v80, v80, v81, v82
    v_max3_f32 v83, v83, v84, v85
    v_max3_f32 v86, v86, v87, v88
    v_max3_f32 v74, v74, v77, v80
    v_max3_f32 v83, v83, v86, v89
    v_max_f32 v74, v74, v83
    v_sub_f32 v75, v127, v74
    v_mul_f32 v75, {T3}, v75
    v_exp_f32 v75, v75
    s_nop 0
    v_mul_f32 v76, v75, v125
    s_mov_b32 exec_lo, 1
    s_mov_b32 exec_hi, 1
    ds_write_b32 v126, v74 offset:{ML}
    ds_add_f32 v126, v76 offset:{ML+8}
    s_mov_b64 exec, -1
    """)
    for n in range(8):
        g(f"s_waitcnt vmcnt({7-n+(2 if (8+n) < wopos else 0)})")
        g(f"v_mfma_f32_16x16x32_bf16 v[98:101], v[{42+4*n}:{45+4*n}], v[{VREG+4*n}:{VREG+4*n+3}], v[98:101]")
    stamp(6)
    g(f"""
    s_lshl_b32 {T0}, {WAVE}, 10
    s_add_u32 {T0}, {T0}, {PART}
    v_add_u32 v1, {T0}, v4
    s_nop 4
    v_mul_f32 v98, v75, v98
    v_mul_f32 v99, v75, v99
    v_mul_f32 v100, v75, v100
    v_mul_f32 v101, v75, v101
    ds_write_b128 v1, v[98:101]
    s_waitcnt lgkmcnt(0)
    s_barrier
    """)
    stamp(7)
    g(f"s_sub_u32 {T0}, {WAVE}, 9")
    g(f"s_cmp_lt_u32 {T0}, 2")
    g("s_cbranch_scc0 L_nopub")
    for w in range(8):
        g(f"ds_read_b128 v[{42+4*w}:{45+4*w}], v103 offset:{w*1024}")
    g(f"""
    s_lshl_b32 {T1}, {T0}, 2
    v_mov_b32 v1, {T1}
    ds_read_b32 v86, v1 offset:{ML}
    ds_read_b32 v87, v1 offset:{ML+8}
    v_mov_b32 v92, {TAG}
    v_cmp_eq_u32 vcc, 1, v105
    s_waitcnt lgkmcnt(6)
    v_pk_add_f32 v[42:43], v[42:43], v[46:47]
    v_pk_add_f32 v[44:45], v[44:45], v[48:49]
    v_pk_add_f32 v[50:51], v[50:51], v[54:55]
    v_pk_add_f32 v[52:53], v[52:53], v[56:57]
    s_waitcnt lgkmcnt(2)
    v_pk_add_f32 v[58:59], v[58:59], v[62:63]
    v_pk_add_f32 v[60:61], v[60:61], v[64:65]
    v_pk_add_f32 v[66:67], v[66:67], v[70:71]
    v_pk_add_f32 v[68:69], v[68:69], v[72:73]
    v_pk_add_f32 v[42:43], v[42:43], v[50:51]
    v_pk_add_f32 v[44:45], v[44:45], v[52:53]
    v_pk_add_f32 v[58:59], v[58:59], v[66:67]
    v_pk_add_f32 v[60:61], v[60:61], v[68:69]
    v_pk_add_f32 v[42:43], v[42:43], v[58:59]
    v_pk_add_f32 v[44:45], v[44:45], v[60:61]
    s_waitcnt lgkmcnt(0)
    v_mul_f32 v86, {T3}, v86
    v_mov_b32 v46, v42
    v_mov_b32 v47, v43
    v_mov_b32 v48, v44
    v_mov_b32 v49, v45
    v_cndmask_b32 v93, v86, v87, vcc
    v_permlane32_swap_b32 v42, v46
    v_permlane32_swap_b32 v43, v47
    v_permlane32_swap_b32 v44, v48
    v_permlane32_swap_b32 v45, v49
    s_nop 1
    v_add_f32 v42, v42, v46
    v_add_f32 v43, v43, v47
    v_add_f32 v44, v44, v48
    v_add_f32 v45, v45, v49
    v_cvt_pk_bf16_f32 v90, v42, v43
    v_cvt_pk_bf16_f32 v91, v44, v45
    s_mov_b32 exec_hi, 0
    global_store_dwordx4 v104, v[90:93], {WSB} sc1
    s_mov_b64 exec, -1
    """)
    stamp(8)
    g("s_waitcnt vmcnt(1)")
    g("s_barrier")
    g("s_branch L_wowait")
    g.lab("L_nopub")
    g("s_waitcnt vmcnt(0)")
    g("s_barrier")
    g(f"s_cmp_lt_u32 {WAVE}, 9")
    g("s_cbranch_scc0 L_wowait")
    g(f"""
    ds_read_b64_tr_b16 v[50:51], v120
    ds_read_b64_tr_b16 v[52:53], v120 offset:{4*288}
    ds_read_b64_tr_b16 v[54:55], v120 offset:{32*288}
    ds_read_b64_tr_b16 v[56:57], v120 offset:{36*288}
    v_mov_b32 v66, 0
    v_mov_b32 v67, 0
    v_mov_b32 v68, 0
    v_mov_b32 v69, 0
    v_mov_b32 v74, {TAG}
    v_mov_b32 v75, {TAG}
    """)
    g(f"s_cmp_lt_u32 {WAVE}, 4")
    g("s_cbranch_scc0 L_wowait")
    g(f"s_mov_b32 {T2}, 0")
    if ts:
        g("s_memrealtime s[96:97]")
        g("s_mov_b32 s98, 0")
    g.lab("L_opoll")
    g(f"""
    global_load_dwordx4 v[42:45], v110, {WSB} sc1
    s_add_u32 {T2}, {T2}, 1
    s_waitcnt vmcnt(0)
    """)
    if ts:
        g(f"s_cmp_eq_u32 {T2}, 1")
        g("s_cbranch_scc0 L_nf")
        g("s_memrealtime s[98:99]")
        g.lab("L_nf")
    g(f"""
    v_cmp_eq_u32 vcc, {TAG}, v44
    s_cmp_ge_u32 {T2}, {spin}
    s_cbranch_scc1 L_ook
    s_cmp_eq_u64 vcc, -1
    s_cbranch_scc0 L_opoll
    """)
    g.lab("L_ook")
    if ts:
        g(f"s_mov_b32 s88, {T2}")
        g("s_memrealtime s[92:93]")
    g(f"""
    ds_write_b64 v117, v[42:43] offset:{AIMG}
    s_mov_b32 exec_lo, 0x00030003
    s_mov_b32 exec_hi, 0x00030003
    ds_write_b32 v118, v45 offset:{STATS}
    s_mov_b64 exec, -1
    """)
    g.lab("L_wowait")
    g("s_waitcnt vmcnt(0) lgkmcnt(0)")
    if ts:
        g("s_memrealtime s[94:95]")
    g("s_barrier")
    stamp(9)
    g(f"s_cmp_lt_u32 {WAVE}, 9")
    g("s_cbranch_scc0 L_notproj")
    g(f"""
    ds_read_b128 v[58:61], v121 offset:{STATS}
    ds_read_b128 v[62:65], v121 offset:{STATS+16}
    ds_read_b128 v[42:45], v119 offset:{AIMG}
    ds_read_b128 v[46:49], v119 offset:{AIMG+64}
    s_waitcnt lgkmcnt(1)
    v_mfma_f32_16x16x32_bf16 v[66:69], v[42:45], v[50:53], v[66:69]
    s_waitcnt lgkmcnt(0)
    v_mfma_f32_16x16x32_bf16 v[66:69], v[46:49], v[54:57], v[66:69]
    v_max3_f32 v70, v58, v60, v62
    v_max_f32 v70, v70, v64
    v_sub_f32 v58, v58, v70
    v_sub_f32 v60, v60, v70
    v_sub_f32 v62, v62, v70
    v_sub_f32 v64, v64, v70
    v_exp_f32 v58, v58
    v_exp_f32 v60, v60
    v_exp_f32 v62, v62
    v_exp_f32 v64, v64
    s_nop 0
    v_mul_f32 v71, v58, v59
    v_fmac_f32 v71, v60, v61
    v_fmac_f32 v71, v62, v63
    v_fmac_f32 v71, v64, v65
    v_rcp_f32 v71, v71
    v_mul_f32 v72, v58, v66
    v_fmac_f32 v72, v60, v67
    v_fmac_f32 v72, v62, v68
    v_fmac_f32 v72, v64, v69
    v_mul_f32 v72, v72, v71
    s_nop 1
    v_mov_b32_dpp v73, v72 quad_perm:[1,0,3,2] row_mask:0xf bank_mask:0xf
    s_mov_b32 exec_lo, 0x55555555
    s_mov_b32 exec_hi, 0x55555555
    global_store_dwordx4 v122, v[72:75], {WSB} sc1
    s_mov_b64 exec, -1
    """)
    stamp(10)
    g("s_barrier")
    g("s_branch L_fin")
    g.lab("L_notproj")
    g(f"""
    s_cmp_eq_u32 {WAVE}, 15
    s_cbranch_scc0 L_fin
    s_and_b32 {T0}, s2, 3
    s_bfe_u32 {T1}, s2, 0x20002
    s_lshr_b32 {T2}, s2, 4
    s_lshl_b32 {T3}, {T0}, 2
    s_add_u32 {T3}, {T3}, {T1}
    s_mul_i32 {T3}, {T3}, 9
    s_add_u32 {T3}, {T3}, {T2}
    s_lshl_b32 {T3}, {T3}, 13
    s_add_u32 {T3}, {T3}, {WS_P}
    v_add_u32 v110, {T3}, v4
    v_add_u32 v112, 4096, v110
    s_mul_i32 {T1}, {T1}, 1152
    s_mul_i32 {T0}, {T0}, 288
    s_add_u32 {T1}, {T1}, {T0}
    s_lshl_b32 {T2}, {T2}, 5
    s_add_u32 {T1}, {T1}, {T2}
    v_lshlrev_b32 v111, 2, v0
    v_add_u32 v111, {T1}, v111
    s_mov_b32 {T2}, 0
    s_barrier
    s_cmp_lt_u32 s2, 144
    s_cbranch_scc0 L_fin
    """)
    if ts: g("s_memrealtime s[96:97]")
    masked_poll2("L_pp", 110, 112, 42, T2)
    if ts: g("s_memrealtime s[94:95]")
    if ts: g(f"s_mov_b32 s86, {T2}")
    g("""
    v_pk_add_f32 v[42:43], v[42:43], v[46:47]
    v_pk_add_f32 v[50:51], v[50:51], v[54:55]
    v_pk_add_f32 v[58:59], v[58:59], v[62:63]
    v_pk_add_f32 v[66:67], v[66:67], v[70:71]
    v_pk_add_f32 v[42:43], v[42:43], v[50:51]
    v_pk_add_f32 v[58:59], v[58:59], v[66:67]
    s_nop 0
    v_pk_add_f32 v[42:43], v[42:43], v[58:59]
    """)
    g(f"""
    s_nop 1
    v_add_f32_dpp v42, v42, v42 row_ror:8 row_mask:0xf bank_mask:0xf
    v_add_f32_dpp v43, v43, v43 row_ror:8 row_mask:0xf bank_mask:0xf
    s_nop 0
    v_mov_b32 v44, v42
    v_mov_b32 v45, v43
    s_nop 0
    v_permlane16_swap_b32 v42, v44
    v_permlane16_swap_b32 v43, v45
    s_nop 0
    v_add_f32 v42, v42, v44
    v_add_f32 v43, v43, v45
    s_nop 0
    v_mov_b32 v44, v42
    v_mov_b32 v45, v43
    s_nop 0
    v_permlane32_swap_b32 v42, v44
    v_permlane32_swap_b32 v43, v45
    s_nop 0
    v_add_f32 v42, v42, v44
    v_add_f32 v43, v43, v45
    s_nop 0
    v_cvt_pk_bf16_f32 v42, v42, v43
    s_mov_b64 exec, 0xff
    buffer_store_dword v42, v111, {sOUT}, 0 offen
    s_mov_b64 exec, -1
    s_cmp_eq_u32 s2, 0
    s_cbranch_scc0 L_fin
    v_mov_b32 v1, 0
    v_mov_b32 v43, {TAG}
    s_mov_b64 exec, 1
    global_store_dword v1, v43, {WSB} sc1
    s_mov_b64 exec, -1
    """)
    g.lab("L_fin")
    if fixed:
        g.lab("L_hold")
        g("s_memrealtime s[90:91]")
        g("s_waitcnt lgkmcnt(0)")
        g("s_sub_u32 s92, s90, s94")
        g(f"s_cmp_lt_u32 s92, {fixed}")
        g("s_cbranch_scc1 L_hold")
    if ts:
        g("s_memrealtime s[90:91]")
        g("s_waitcnt lgkmcnt(0)")
    if dbgts:
        g(f"s_cmp_eq_u32 {WAVE}, 0")
        g("s_cbranch_scc1 L_dbg")
        g(f"s_cmp_eq_u32 {WAVE}, 9")
        g("s_cbranch_scc1 L_dbg")
        g(f"s_cmp_eq_u32 {WAVE}, 15")
        g("s_cbranch_scc0 L_end")
        g.lab("L_dbg")
        for _ in range(8):
            g("s_sleep 127")
        g("s_mov_b64 exec, 1")
        g("v_mov_b32 v1, 0")
        g("s_not_b32 s92, s64")
        g("v_mov_b32 v2, s92")
        g("global_atomic_umax v1, v2, s[16:17]")
        for k in range(1, 11):
            g(f"v_mov_b32 v2, s{64+2*k}")
            g(f"global_atomic_umax v1, v2, s[16:17] offset:{4*k}")
        g("v_mov_b32 v2, s90")
        g("global_atomic_umax v1, v2, s[16:17] offset:44")
        g("v_mov_b32 v2, s64")
        g("global_atomic_umax v1, v2, s[16:17] offset:48")
    elif ts:
        g(f"""
        s_lshl_b32 {T0}, s2, 4
        s_add_u32 {T0}, {T0}, {WAVE}
        s_lshl_b32 {T0}, {T0}, 7
        s_add_u32 {T0}, {T0}, {WS_TS}
        v_mov_b32 v1, {T0}
        s_mov_b64 exec, 1
        """)
        for k in range(13):
            g(f"v_mov_b32 v2, s{64+2*k}")
            g(f"global_store_dword v1, v2, {WSB} offset:{4*k}")
        g("v_mov_b32 v2, s90")
        g(f"global_store_dword v1, v2, {WSB} offset:60")
        g("v_mov_b32 v2, s92")
        g(f"global_store_dword v1, v2, {WSB} offset:56")
        g("v_mov_b32 v2, s94")
        g(f"global_store_dword v1, v2, {WSB} offset:52")
        g("v_mov_b32 v2, s96")
        g(f"global_store_dword v1, v2, {WSB} offset:64")
        g("v_mov_b32 v2, s98")
        g(f"global_store_dword v1, v2, {WSB} offset:68")
    if lite:
        g(f"""
        s_cmp_eq_u32 {WAVE}, 15
        s_cbranch_scc0 L_end
        s_memrealtime s[90:91]
        s_lshl_b32 {T0}, s2, 3
        s_add_u32 {T0}, {T0}, {WS_TS}
        v_mov_b32 v1, {T0}
        s_waitcnt lgkmcnt(0)
        v_mov_b32 v2, s64
        v_mov_b32 v3, s90
        s_mov_b64 exec, 1
        global_store_dwordx2 v1, v[2:3], {WSB}
        """)
    g.lab("L_end")
    g("s_endpgm")
    tail_txt = f"""
.section .rodata,"a"
.p2align 6
.amdhsa_kernel {NAME}
  .amdhsa_next_free_vgpr 128
  .amdhsa_next_free_sgpr 100
  .amdhsa_accum_offset 128
  .amdhsa_group_segment_fixed_size 0
  .amdhsa_kernarg_size 64
  .amdhsa_user_sgpr_count 2
  .amdhsa_user_sgpr_kernarg_segment_ptr 1
  .amdhsa_system_sgpr_workgroup_id_x 1
.end_amdhsa_kernel
"""
    return "\n".join(hdr) + "\n" + "\n".join(g.L) + tail_txt

if __name__ == "__main__":
    import argparse
    ap = argparse.ArgumentParser()
    ap.add_argument("-o", default="k.s")
    ap.add_argument("--depth", type=int, default=2)
    ap.add_argument("--nq", type=int, default=11)
    ap.add_argument("--depth2", type=int, default=0)
    ap.add_argument("--first", type=int, default=2)
    ap.add_argument("--ts", action="store_true")
    ap.add_argument("--mimic", action="store_true")
    ap.add_argument("--spin", type=int, default=100000)
    ap.add_argument("--defw", action="store_true")
    ap.add_argument("--dbgts", action="store_true")
    ap.add_argument("--fixed", type=int, default=0)
    ap.add_argument("--swapbs", action="store_true")
    ap.add_argument("--w0early", action="store_true")
    ap.add_argument("--nowarmwo", action="store_true")
    ap.add_argument("--wopos", type=int, default=16)
    ap.add_argument("--hkvxor", type=int, default=0)
    ap.add_argument("--hkvmap", type=int, default=0)
    ap.add_argument("--nocpf", action="store_true")
    ap.add_argument("--nopret", action="store_true")
    ap.add_argument("--pretq", action="store_true")
    ap.add_argument("--lite", action="store_true")
    ap.add_argument("--kvdef", action="store_true")
    ap.add_argument("--cpfn", type=int, default=256)
    ap.add_argument("--pretmod", default="")
    a = ap.parse_args()
    open(a.o, "w").write(gen(depth=a.depth, nq=a.nq, depth2=a.depth2, first=a.first, ts=a.ts, mimic=a.mimic, spin=a.spin, nt_w=not a.defw,
                             dbgts=a.dbgts, fixed=a.fixed, swapbs=a.swapbs, w0late=not a.w0early, warm_wo=not a.nowarmwo, wopos=a.wopos, hkvxor=a.hkvxor, hkvmap=a.hkvmap, cpf=not a.nocpf, pret=not a.nopret, pretq=a.pretq, pretmod=a.pretmod, lite=a.lite, kvmod='' if a.kvdef else ' nt', cpfn=a.cpfn))
```

```python
import sys, struct
NAME = "standalone__sliding_block_cached__decode_kernel"

ML    = 0
STATS = 64
MW    = 192
QIMG  = 256
PIMG  = 768
AIMG  = 2816
MARR  = 5120
XIMG  = 6144
W     = 10752
KIMG  = 29184
PART  = KIMG
LDS_BYTES = KIMG + 131072
WS_OS = 4096
WS_O  = 65536
WS_Q  = 589824
WS_P  = 1114112
WS_TS = 4*1024*1024

SCALE_LOG2E = 0.08838834764831845 * 1.4426950408889634

def f2u(x):
    return struct.unpack("<I", struct.pack("<f", x))[0]

class G:
    def __init__(s):
        s.L = []
    def __call__(s, t):
        for line in t.strip().split("\n"):
            s.L.append("    " + line.strip())
    def lab(s, t):
        s.L.append(t + ":")

def gen(depth=2, nq=10, depth2=0, first=1, swapbs=False, spin=100000, ts=False, mimic=False, nt_w=True, warm_out=True,
        dbgts=False, fixed=0, w0late=True, warm_wo=True, wopos=16, hkvxor=0, hkvmap=0, cpf=True, pret=True, pretq=False, pretmod='', lite=False, kvmod=' nt', cpfn=256):
    ts = ts or dbgts
    g = G()
    hdr = [f"; @launch grid=(256,1,1) block=(1024,1,1) lds={LDS_BYTES}",
           '.amdgcn_target "amdgcn-amd-amdhsa--gfx950"', ".text", f".globl {NAME}", ".p2align 8",
           f".type {NAME},@function", f"{NAME}:"]
    NT = kvmod
    NTW = " nt" if nt_w else ""
    sK, sV, sWQ, sWO, sX, sOUT = "s[20:23]", "s[24:27]", "s[28:31]", "s[32:35]", "s[36:39]", "s[40:43]"
    WSB = "s[18:19]"
    HKV, J, B, S = "s44", "s45", "s46", "s47"
    KVB, ROT, TAG = "s48", "s49", "s50"
    T0, T1, T2, T3 = "s51", "s52", "s53", "s54"
    KM0 = "s55"
    WAVE = "s3"
    CS = 1.4426950408889634 if mimic else SCALE_LOG2E
    def stamp(k):
        if lite and k == 0:
            g("s_memrealtime s[64:65]")
        if ts:
            g(f"s_memrealtime s[{64+2*k}:{65+2*k}]")
    def srd(dst, lo, hi, size):
        a = int(dst[2:dst.index(":")])
        g(f"""
        s_mov_b32 s{a}, {lo}
        s_and_b32 s{a+1}, {hi}, 0xffff
        s_mov_b32 s{a+2}, {size}
        s_mov_b32 s{a+3}, 0x20000
        """)
    g("s_cmp_ge_u32 s2, 256")
    g("s_cbranch_scc1 L_end")
    if ts:
        for k in range(1, 15):
            g(f"s_mov_b32 s{64+2*k}, 0")
    stamp(0)
    if fixed:
        g("s_memrealtime s[94:95]")
    g("s_load_dwordx16 s[4:19], s[0:1], 0")
    g(f"""
    v_lshrrev_b32 v1, 6, v0
    v_and_b32 v0, 63, v0
    v_readfirstlane_b32 {WAVE}, v1
    {"s_and_b32 " + HKV + ", s2, 15" if hkvmap == 0 else "s_and_b32 " + HKV + ", s2, 7"}
    {"s_nop 0" if hkvmap == 0 else "s_lshl_b32 " + HKV + ", " + HKV + ", 1"}
    {"s_nop 0" if hkvmap == 0 else "s_bfe_u32 " + T1 + ", s2, 0x10003"}
    {"s_nop 0" if hkvmap == 0 else "s_or_b32 " + HKV + ", " + HKV + ", " + T1}
    s_xor_b32 {HKV}, {HKV}, {hkvxor}
    s_lshr_b32 {T0}, s2, 4
    s_lshr_b32 {B if not swapbs else S}, {T0}, 2
    s_and_b32 {S if not swapbs else B}, {T0}, 3
    s_lshl_b32 {J}, {B}, 2
    s_add_u32 {J}, {J}, {S}
    v_lshrrev_b32 v1, 3, v0
    v_lshlrev_b32 v1, 13, v1
    v_and_b32 v9, 7, v0
    v_lshl_add_u32 v9, v9, 4, v1
    v_add_u32 v127, 36, v0
    v_lshrrev_b32 v1, 3, v127
    v_lshlrev_b32 v1, 13, v1
    v_and_b32 v127, 7, v127
    v_lshl_add_u32 v127, v127, 4, v1
    v_lshlrev_b32 v4, 4, v0
    """)
    g(f"""
    s_lshr_b32 {T2}, {J}, 2
    s_mul_i32 {T0}, {T2}, 144
    s_mul_i32 {T1}, {WAVE}, 9
    s_add_u32 {T0}, {T0}, {T1}
    s_lshl_b32 {T0}, {T0}, 13
    s_lshl_b32 {T1}, {HKV}, 9
    s_add_u32 {T0}, {T0}, {T1}
    s_and_b32 {T1}, {J}, 3
    s_lshl_b32 {T1}, {T1}, 7
    s_add_u32 {T0}, {T0}, {T1}
    s_mul_i32 {T1}, {WAVE}, 1152
    s_add_u32 m0, {T1}, {W}
    s_mul_i32 {T2}, {T2}, 288
    s_mul_i32 {T1}, {WAVE}, 1152
    s_add_u32 {T2}, {T2}, {T1}
    s_mul_i32 {T3}, {WAVE}, 288
    s_waitcnt lgkmcnt(0)
    """)
    if ts:
        g("s_memrealtime s[96:97]")
    srd(sWQ, "s10", "s11", 576*8192)
    g(f"""
    s_mov_b32 exec_lo, -1
    s_mov_b32 exec_hi, 0xf
    buffer_load_dwordx4 v9, {sWQ}, {T0} offen{NTW} lds
    s_add_u32 m0, m0, 576
    s_mov_b32 s36, s4
    s_and_b32 s37, s5, 0xffff
    buffer_load_dwordx4 v127, {sWQ}, {T0} offen{NTW} lds
    s_mov_b32 s38, 4608
    s_mov_b32 s39, 0x20000
    s_mov_b64 exec, -1
    s_cmp_lt_u32 {WAVE}, 4
    s_cbranch_scc0 L_nox
    s_add_u32 m0, {T3}, {XIMG}
    s_mov_b32 exec_lo, 0x3ffff
    s_mov_b32 exec_hi, 0
    buffer_load_dwordx4 v4, {sX}, {T2} offen lds
    s_mov_b64 exec, -1
    """)
    g.lab("L_nox")
    g(f"""
    v_mov_b32 v110, 0
    v_mov_b32 v111, 0
    v_mov_b32 v112, 0
    v_mov_b32 v113, 0
    s_cmp_eq_u32 {WAVE}, 0
    s_cbranch_scc0 L_i1
    global_load_dword v126, v110, {WSB}
    """)
    g.lab("L_i1")
    g(f"""
    s_cmp_eq_u32 {WAVE}, 1
    s_cbranch_scc0 L_i3
    ds_write_b128 v112, v[110:113] offset:{ML}
    ds_write_b128 v112, v[110:113] offset:{ML+16}
    s_waitcnt lgkmcnt(0)
    """)
    g.lab("L_i3")
    g(f"""
    s_lshl_b32 {T0}, {B}, 4
    s_add_u32 {T0}, {T0}, {HKV}
    s_lshl_b32 {KVB}, {T0}, 21
    s_lshl_b32 {T0}, {S}, 17
    s_add_u32 {KVB}, {KVB}, {T0}
    s_add_u32 {KVB}, {KVB}, 0x180000
    s_lshl_b32 {T0}, {WAVE}, 13
    s_add_u32 {KVB}, {KVB}, {T0}
    s_add_u32 {KM0}, {T0}, {KIMG}
    s_lshr_b32 {ROT}, s2, 3
    s_add_u32 {ROT}, {ROT}, {WAVE}
    v_and_b32 v2, 15, v0
    v_lshrrev_b32 v3, 4, v0
    v_xor_b32 v1, v2, v3
    v_lshlrev_b32 v1, 4, v1
    v_lshl_add_u32 v5, v3, 8, v1
    v_xor_b32 v6, 64, v5
    v_xor_b32 v7, 0x80, v5
    v_xor_b32 v8, 0xc0, v5
    """)
    srd(sK, "s6", "s7", 0x8000000)
    srd(sV, "s8", "s9", 0x8000000)
    if ts:
        g("s_memrealtime s[98:99]")
    g("s_barrier")
    VREG = 10
    def stream_load(n):
        m = n & 7
        g(f"""
        s_add_u32 {T0}, {ROT}, {m}
        s_and_b32 {T0}, {T0}, 7
        s_lshl_b32 {T0}, {T0}, 10
        s_add_u32 {T0}, {T0}, {KVB}
        """)
        if n < 8:
            g(f"""
            s_add_u32 m0, {KM0}, {m*1024}
            s_nop 0
            buffer_load_dwordx4 v{5 + (m & 3)}, {sK}, {T0} offen{NT} lds
            """)
        else:
            r = VREG + 4*m
            g(f"buffer_load_dwordx4 v[{r}:{r+3}], v4, {sV}, {T0} offen{NT}")
    def masked_poll(lbl, addr_lo, addr_hi, base, cnt_reg, ts_slot=None, first_round_extra=None):
        PEND = "s62"
        g(f"s_mov_b32 {PEND}, 0xff")
        g(f"s_mov_b32 {cnt_reg}, 0")
        if ts and lbl == "L_pp":
            g("s_memrealtime s[96:97]")
        g.lab(f"{lbl}_round")
        for n in range(8):
            g(f"s_bitcmp1_b32 {PEND}, {n}")
            g(f"s_cbranch_scc0 {lbl}_s{n}")
            g(f"global_load_dwordx4 v[{base+4*n}:{base+4*n+3}], v{addr_lo if n < 4 else addr_hi}, {WSB} offset:{(n & 3)*1024} sc1")
            g.lab(f"{lbl}_s{n}")
        g(f"s_add_u32 {cnt_reg}, {cnt_reg}, 1")
        if ts and lbl == "L_pp":
            g(f"s_cmp_eq_u32 {cnt_reg}, 1")
            g("s_cbranch_scc0 L_pp_n1")
            g("s_memrealtime s[98:99]")
            g.lab("L_pp_n1")
        g("s_waitcnt vmcnt(0)")
        if ts and lbl == "L_pp":
            g(f"s_cmp_eq_u32 {cnt_reg}, 1")
            g("s_cbranch_scc0 L_pp_n2")
            g("s_memrealtime s[92:93]")
            g.lab("L_pp_n2")
        for n in range(8):
            g(f"s_bitcmp1_b32 {PEND}, {n}")
            g(f"s_cbranch_scc0 {lbl}_c{n}")
            g(f"v_cmp_eq_u32 vcc, {TAG}, v{base+4*n+1}")
            g(f"v_cmp_eq_u32 s[58:59], {TAG}, v{base+4*n+3}")
            g("s_nop 1")
            g("s_and_b64 vcc, vcc, s[58:59]")
            g("s_cmp_eq_u64 vcc, -1")
            g(f"s_cbranch_scc0 {lbl}_c{n}")
            g(f"s_bitset0_b32 {PEND}, {n}")
            g.lab(f"{lbl}_c{n}")
        g(f"s_cmp_eq_u32 {PEND}, 0")
        g(f"s_cbranch_scc1 {lbl}_done")
        g(f"s_cmp_lt_u32 {cnt_reg}, {spin}")
        g(f"s_cbranch_scc1 {lbl}_round")
        g.lab(f"{lbl}_done")
    def masked_poll2(lbl, addr_lo, addr_hi, base, cnt_reg, tagw=2):
        PEND = "s62"
        for n in range(8):
            g(f"global_load_dwordx4 v[{base+4*n}:{base+4*n+3}], v{addr_lo if n < 4 else addr_hi}, {WSB} offset:{(n & 3)*1024} sc1")
        g(f"s_mov_b32 {PEND}, 0")
        g(f"s_mov_b32 {cnt_reg}, 1")
        for n in range(8):
            g(f"s_waitcnt vmcnt({7-n})")
            g(f"v_cmp_ne_u32 vcc, {TAG}, v{base+4*n+tagw}")
            g("s_nop 0")
            g("s_cmp_lg_u64 vcc, 0")
            g(f"s_cselect_b32 {T0}, {1 << n}, 0")
            g(f"s_or_b32 {PEND}, {PEND}, {T0}")
        g(f"s_cmp_eq_u32 {PEND}, 0")
        g(f"s_cbranch_scc1 {lbl}_done")
        g.lab(f"{lbl}_round")
        for n in range(8):
            g(f"s_bitcmp1_b32 {PEND}, {n}")
            g(f"s_cbranch_scc0 {lbl}_s{n}")
            g(f"global_load_dwordx4 v[{base+4*n}:{base+4*n+3}], v{addr_lo if n < 4 else addr_hi}, {WSB} offset:{(n & 3)*1024} sc1")
            g.lab(f"{lbl}_s{n}")
        g(f"s_add_u32 {cnt_reg}, {cnt_reg}, 1")
        g("s_waitcnt vmcnt(0)")
        for n in range(8):
            g(f"s_bitcmp1_b32 {PEND}, {n}")
            g(f"s_cbranch_scc0 {lbl}_c{n}")
            g(f"v_cmp_ne_u32 vcc, {TAG}, v{base+4*n+tagw}")
            g("s_nop 0")
            g("s_cmp_lg_u64 vcc, 0")
            g(f"s_cbranch_scc1 {lbl}_c{n}")
            g(f"s_bitset0_b32 {PEND}, {n}")
            g.lab(f"{lbl}_c{n}")
        g(f"s_cmp_eq_u32 {PEND}, 0")
        g(f"s_cbranch_scc1 {lbl}_done")
        g(f"s_cmp_lt_u32 {cnt_reg}, {spin}")
        g(f"s_cbranch_scc1 {lbl}_round")
        g.lab(f"{lbl}_done")
    def lds_spin(lbl, off, thresh, tmpv, zero_v):
        g(f"s_mov_b32 {T2}, 0")
        g.lab(lbl)
        g(f"""
        ds_read_b32 v{tmpv}, v{zero_v} offset:{off}
        s_add_u32 {T2}, {T2}, 1
        s_waitcnt lgkmcnt(0)
        v_readfirstlane_b32 {T0}, v{tmpv}
        s_cmp_ge_u32 {T2}, {spin*8}
        s_cbranch_scc1 {lbl}_ok
        s_cmp_lt_u32 {T0}, {thresh}
        s_cbranch_scc1 {lbl}
        """)
        g.lab(f"{lbl}_ok")
    uniq = [0]
    def pre_qk():
        g(f"""
        v_xor_b32 v1, v2, v3
        v_lshlrev_b32 v1, 4, v1
        v_lshl_add_u32 v1, v2, 8, v1
        v_add_u32 v110, {KM0}, v1
        v_xor_b32 v111, 64, v110
        v_xor_b32 v112, 0x80, v110
        v_xor_b32 v113, 0xc0, v110
        """)
        for t in range(2):
            for j in range(4):
                r = 42 + (t*4 + j)*4
                g(f"ds_read_b128 v[{r}:{r+3}], v{110+j} offset:{t*4096}")
        g("""
        v_and_b32 v1, 1, v0
        v_cmp_eq_u32 vcc, 1, v1
        v_mov_b32 v114, 0x0c0c0100
        v_mov_b32 v115, 0x01000c0c
        v_mov_b32 v116, 0x0c0c0302
        v_mov_b32 v117, 0x03020c0c
        v_cndmask_b32 v114, v114, v115, vcc
        v_cndmask_b32 v116, v116, v117, vcc
        v_mov_b32 v115, 0x0c0c0c0c
        v_bfe_u32 v1, v0, 1, 2
        """)
        for r in range(4):
            g(f"v_cmp_eq_u32 vcc, {r}, v1")
            g(f"v_mov_b32 v{90+2*r}, 0")
            g(f"v_mov_b32 v{91+2*r}, 0")
            g(f"v_cndmask_b32 v{102+r}, v115, v114, vcc")
            g(f"v_cndmask_b32 v{106+r}, v115, v116, vcc")
        g(f"""
        v_and_b32 v1, 1, v0
        v_lshlrev_b32 v1, 8, v1
        v_lshl_add_u32 v120, v3, 4, v1
        v_lshrrev_b32 v1, 5, v0
        v_lshlrev_b32 v121, 2, v1
        v_and_b32 v122, 3, v0
        v_lshlrev_b32 v122, 4, v122
        v_bfe_u32 v123, v0, 2, 3
        v_lshl_add_u32 v122, v123, 1, v122
        v_lshl_add_u32 v122, v1, 6, v122
        s_lshl_b32 {T1}, {WAVE}, 7
        s_add_u32 {T1}, {T1}, {PIMG}
        v_add_u32 v122, {T1}, v122
        v_lshrrev_b32 v123, 3, v2
        v_lshlrev_b32 v123, 6, v123
        v_lshl_add_u32 v123, v3, 4, v123
        v_add_u32 v123, {T1}, v123
        v_mov_b32 v98, 0
        v_mov_b32 v99, 0
        v_mov_b32 v100, 0
        v_mov_b32 v101, 0
        v_cmp_le_u32 vcc, 18, v0
        v_mov_b32 v1, 0
        v_mov_b32 v124, {1152 - 18*16}
        v_cndmask_b32 v1, v1, v124, vcc
        v_add_u32 v124, v1, v4
        """)
        if pret:
            u = uniq[0]; uniq[0] += 1
            g(f"""
            s_cmp_lt_u32 {WAVE}, 9
            s_cbranch_scc0 L_np1_{u}
            s_mul_i32 {T0}, {S}, {4*9*8192}
            s_lshl_b32 {T1}, {WAVE}, 13
            s_add_u32 {T0}, {T0}, {T1}
            s_lshl_b32 {T1}, {HKV}, 2
            s_add_u32 {T1}, {T1}, {B}
            s_lshl_b32 {T1}, {T1}, 7
            s_add_u32 {T0}, {T0}, {T1}
            s_add_u32 {T0}, {T0}, {WS_P}
            v_mul_u32_u24 v116, {9*8192}, v0
            v_add_u32 v116, {T0}, v116
            s_mov_b64 exec, 0xf
            global_load_dword v9, v116, {WSB} {pretmod}
            s_mov_b64 exec, -1
            s_branch L_np2_{u}
            """)
            g.lab(f"L_np1_{u}")
            g(f"""
            s_cmp_eq_u32 {WAVE}, 9
            s_cbranch_scc0 L_np3_{u}
            s_lshl_b32 {T0}, {HKV}, 4
            s_add_u32 {T0}, {T0}, {J}
            s_lshl_b32 {T1}, {T0}, 10
            s_add_u32 {T1}, {T1}, {WS_O}
            v_lshlrev_b32 v116, 7, v0
            v_add_u32 v116, {T1}, v116
            s_mov_b64 exec, 0xff
            global_load_dword v9, v116, {WSB} {pretmod}
            s_mov_b64 exec, -1
            s_branch L_np2_{u}
            """)
            g.lab(f"L_np3_{u}")
            g(f"""
            s_cmp_eq_u32 {WAVE}, 15
            s_cbranch_scc0 L_np2_{u}
            s_cmp_lt_u32 s2, 144
            s_cbranch_scc0 L_np2_{u}
            s_and_b32 {T0}, s2, 3
            s_bfe_u32 {T1}, s2, 0x20002
            s_lshr_b32 {T2}, s2, 4
            s_mul_i32 {T1}, {T1}, 1152
            s_mul_i32 {T0}, {T0}, 288
            s_add_u32 {T1}, {T1}, {T0}
            s_lshl_b32 {T2}, {T2}, 5
            s_add_u32 {T1}, {T1}, {T2}
            v_mov_b32 v116, {T1}
            s_mov_b64 exec, 1
            buffer_load_dword v9, v116, {sOUT}, 0 offen
            s_mov_b64 exec, -1
            """)
            g.lab(f"L_np2_{u}")
    if cpf:
        g(f"""
        s_cmp_eq_u32 {WAVE}, 4
        s_cbranch_scc0 L_nocpf
        s_cmp_lt_u32 s2, {cpfn}
        s_cbranch_scc0 L_nocpf
        s_getpc_b64 s[56:57]
        """)
        g.lab("L_pc")
        g(f"""
        v_lshlrev_b32 v1, 7, v0
        v_min_u32 v110, L_end-L_pc, v1
        global_load_dword v112, v110, s[56:57]
        """)
        if ts:
            g(f"""
            v_add_u32 v1, 8192, v1
            v_min_u32 v111, L_end-L_pc, v1
            global_load_dword v113, v111, s[56:57]
            """)
        g.lab("L_nocpf")
    if pret and pretq:
        g(f"""
        s_cmp_eq_u32 {WAVE}, 5
        s_cbranch_scc0 L_nopq
        s_lshl_b32 {T0}, {HKV}, 15
        s_lshr_b32 {T1}, {J}, 2
        s_lshl_b32 {T1}, {T1}, 11
        s_add_u32 {T0}, {T0}, {T1}
        s_and_b32 {T1}, {J}, 3
        s_lshl_b32 {T1}, {T1}, 9
        s_add_u32 {T0}, {T0}, {T1}
        s_add_u32 {T0}, {T0}, {WS_Q}
        v_bfe_u32 v1, v0, 2, 2
        v_lshlrev_b32 v110, 13, v1
        v_and_b32 v1, 3, v0
        v_lshl_add_u32 v110, v1, 7, v110
        v_add_u32 v110, {T0}, v110
        s_mov_b64 exec, 0xffff
        global_load_dword v9, v110, {WSB} {pretmod}
        s_mov_b64 exec, -1
        """)
        g.lab("L_nopq")
    g(f"s_cmp_eq_u32 {WAVE}, 0")
    g("s_cbranch_scc1 L_w0")
    for n in range(first):
        stream_load(n)
    srd(sWO, "s12", "s13", 4096*1152)
    srd(sOUT, "s14", "s15", 4608)
    if warm_wo:
        g(f"""
        s_cmp_eq_u32 {WAVE}, 3
        s_cbranch_scc0 L_nowarm
        s_lshl_b32 {T0}, {HKV}, 8
        s_lshl_b32 {T1}, {B}, 6
        s_add_u32 {T0}, {T0}, {T1}
        s_mul_i32 {T0}, {T0}, 1152
        v_and_b32 v1, 1, v0
        v_mul_u32_u24 v1, {63*1152}, v1
        buffer_load_dword v127, v1, {sWO}, {T0} offen
        v_mov_b32 v1, {WS_P + 1100000}
        global_load_dword v126, v1, {WSB}
        s_waitcnt vmcnt({first+2})
        s_branch L_warmed
        """)
        g.lab("L_nowarm")
    g(f"s_waitcnt vmcnt({first})")
    if warm_wo:
        g.lab("L_warmed")
    g(f"""
    v_mov_b32 v1, 0
    v_mov_b32 v110, 1
    s_mov_b64 exec, 1
    ds_add_u32 v1, v110 offset:{ML+20}
    s_mov_b64 exec, -1
    """)
    stamp(1)
    for n in range(first, nq + 1):
        if n >= depth:
            g(f"s_waitcnt vmcnt({depth-1})")
        stream_load(n)
    stamp(2)
    g(f"s_waitcnt vmcnt({nq - 7})")
    pre_qk()
    g("s_branch L_bar2")
    g.lab("L_w0")
    nfront = first if w0late else nq + 1
    for n in range(nfront):
        stream_load(n)
    srd(sWO, "s12", "s13", 4096*1152)
    srd(sOUT, "s14", "s15", 4608)
    g(f"""
    v_and_b32 v1, 3, v0
    v_mul_u32_u24 v1, 288, v1
    v_lshl_add_u32 v42, v3, 4, v1
    v_add_u32 v42, {XIMG}, v42
    v_lshl_add_u32 v43, v3, 3, v1
    v_add_u32 v43, {XIMG+256}, v43
    v_lshrrev_b32 v1, 2, v2
    v_lshl_add_u32 v120, v3, 3, v1
    v_lshlrev_b32 v120, 7, v120
    v_lshl_add_u32 v121, v3, 2, v1
    v_lshlrev_b32 v121, 7, v121
    v_and_b32 v1, 3, v0
    v_lshl_add_u32 v120, v1, 3, v120
    v_lshl_add_u32 v121, v1, 3, v121
    v_add_u32 v120, {W}, v120
    v_add_u32 v121, {W + 128*128}, v121
    """)
    for r in range(44, 60):
        g(f"v_mov_b32 v{r}, 0")
    g(f"""
    v_mov_b32 v1, 0
    s_mov_b32 {T2}, 0
    s_waitcnt vmcnt({nfront})
    v_readfirstlane_b32 {TAG}, v126
    s_mul_i32 {TAG}, {TAG}, 1664525
    s_add_u32 {TAG}, {TAG}, 1013904223
    """)
    g.lab("L_cnt")
    g(f"""
    ds_read_b32 v110, v1 offset:{ML+20}
    s_add_u32 {T2}, {T2}, 1
    s_waitcnt lgkmcnt(0)
    v_readfirstlane_b32 {T0}, v110
    s_cmp_ge_u32 {T2}, {spin*8}
    s_cbranch_scc1 L_cntok
    s_cmp_lt_u32 {T0}, 15
    s_cbranch_scc1 L_cnt
    """)
    g.lab("L_cntok")
    stamp(1)
    for kk in range(4):
        g(f"ds_read_b128 v[{60+4*kk}:{63+4*kk}], v42 offset:{kk*64}")
    g("ds_read_b64 v[76:77], v43")
    def breads(kk, buf):
        base = 78 + buf*16
        for t in range(4):
            g(f"ds_read_b64_tr_b16 v[{base+4*t}:{base+4*t+1}], v120 offset:{kk*4096 + t*32}")
            g(f"ds_read_b64_tr_b16 v[{base+4*t+2}:{base+4*t+3}], v120 offset:{kk*4096 + t*32 + 512}")
    breads(0, 0)
    for kk in range(4):
        if kk < 3:
            g("s_waitcnt lgkmcnt(0)")
            breads(kk + 1, (kk + 1) & 1)
        else:
            g("s_waitcnt lgkmcnt(0)")
            for t in range(4):
                g(f"ds_read_b64_tr_b16 v[{78+2*t}:{79+2*t}], v121 offset:{t*32}")
        base = 78 + (kk & 1)*16
        for t in range(4):
            g(f"v_mfma_f32_16x16x32_bf16 v[{44+4*t}:{47+4*t}], v[{60+4*kk}:{63+4*kk}], v[{base+4*t}:{base+4*t+3}], v[{44+4*t}:{47+4*t}]")
    g("s_waitcnt lgkmcnt(0)")
    for t in range(4):
        g(f"v_mfma_f32_16x16x16_bf16 v[{44+4*t}:{47+4*t}], v[76:77], v[{78+2*t}:{79+2*t}], v[{44+4*t}:{47+4*t}]")
    g(f"""
    s_mov_b32 s56, 0xffff0000
    s_mov_b32 s57, 0
    s_mov_b32 s58, 0
    s_mov_b32 s59, 0xffff
    s_mov_b32 s60, 0
    s_mov_b32 s61, 0xffff0000
    s_lshl_b32 {T0}, {HKV}, 15
    s_lshr_b32 {T1}, {J}, 2
    s_lshl_b32 {T1}, {T1}, 11
    s_add_u32 {T0}, {T0}, {T1}
    s_and_b32 {T1}, {J}, 3
    s_lshl_b32 {T1}, {T1}, 9
    s_add_u32 {T0}, {T0}, {T1}
    s_add_u32 {T0}, {T0}, {WS_Q}
    v_lshlrev_b32 v78, 13, v3
    v_lshl_add_u32 v78, v2, 3, v78
    v_add_u32 v78, {T0}, v78
    v_mov_b32 v61, {TAG}
    v_mov_b32 v63, {TAG}
    v_mov_b32 v65, {TAG}
    v_mov_b32 v67, {TAG}
    """)
    for t in range(4):
        g(f"v_cndmask_b32 v{60+2*t}, v{44+4*t}, v{45+4*t}, s[56:57]")
        g(f"v_cndmask_b32 v{60+2*t}, v{60+2*t}, v{46+4*t}, s[58:59]")
        g(f"v_cndmask_b32 v{60+2*t}, v{60+2*t}, v{47+4*t}, s[60:61]")
        g(f"global_store_dwordx2 v78, v[{60+2*t}:{61+2*t}], {WSB} offset:{t*128} sc1")
    stamp(2)
    for n in range(nfront, nq + 1):
        stream_load(n)
    if warm_out:
        g(f"buffer_load_dword v125, v4, {sOUT}, 0 offen")
    g(f"""
    s_lshl_b32 {T0}, {HKV}, 15
    s_lshl_b32 {T1}, {B}, 13
    s_add_u32 {T0}, {T0}, {T1}
    s_add_u32 {T0}, {T0}, {WS_Q}
    v_add_u32 v110, {T0}, v4
    v_add_u32 v111, 4096, v110
    s_mov_b32 {T2}, 0
    """)
    masked_poll("L_qp", 110, 111, 44, T2)
    if ts: g(f"s_mov_b32 s86, {T2}")
    for hf in range(2):
        a0 = 44 + 4*hf
        for rq in range(1, 4):
            n = 2*rq + hf
            g(f"v_add_f32 v{a0}, v{a0}, v{44+4*n}")
            g(f"v_add_f32 v{a0+2}, v{a0+2}, v{46+4*n}")
    g(f"""
    v_cvt_pk_bf16_f32 v44, v44, v46
    v_cvt_pk_bf16_f32 v48, v48, v50
    v_lshlrev_b32 v1, 2, v0
    ds_write_b32 v1, v44 offset:{QIMG}
    ds_write_b32 v1, v48 offset:{QIMG+256}
    v_mov_b32 v1, 0
    v_mov_b32 v57, {TAG}
    v_mov_b32 v58, 1
    ds_write_b32 v1, v57 offset:{ML+16}
    ds_write_b32 v1, v58 offset:{ML+24}
    """)
    stamp(3)
    pre_qk()
    g("s_branch L_qready")
    g.lab("L_bar2")
    g("v_mov_b32 v1, 0")
    lds_spin("L_qflag", ML+24, 1, 126, 1)
    g.lab("L_qready")
    stamp(4)
    g(f"""
    ds_read_b128 v[74:77], v120 offset:{QIMG}
    ds_read_b128 v[78:81], v120 offset:{QIMG+64}
    ds_read_b128 v[82:85], v120 offset:{QIMG+128}
    ds_read_b128 v[86:89], v120 offset:{QIMG+192}
    v_mov_b32 v1, 0
    ds_read_b32 v126, v1 offset:{ML+16}
    """)
    g("s_waitcnt lgkmcnt(1)")
    for j in range(4):
        g(f"v_mfma_f32_16x16x32_bf16 v[90:93], v[{74+4*j}:{77+4*j}], v[{42+4*j}:{45+4*j}], v[90:93]")
        g(f"v_mfma_f32_16x16x32_bf16 v[94:97], v[{74+4*j}:{77+4*j}], v[{58+4*j}:{61+4*j}], v[94:97]")
    g(f"""
    s_mov_b32 s56, 0xffff0000
    s_mov_b32 s57, 0xffff0000
    s_mov_b32 s58, 0
    s_mov_b32 s59, -1
    s_mov_b32 {T3}, 0x{f2u(CS):08x}
    s_waitcnt lgkmcnt(0)
    v_readfirstlane_b32 {TAG}, v126
    s_nop 1
    v_cndmask_b32 v110, v90, v94, s[56:57]
    v_cndmask_b32 v111, v91, v95, s[56:57]
    v_cndmask_b32 v110, v110, v111, s[58:59]
    """)
    if mimic:
        g(f"""
        v_cvt_pk_bf16_f32 v110, v110, v110
        v_lshlrev_b32 v110, 16, v110
        v_mul_f32 v110, 0x{f2u(0.08838834764831845):08x}, v110
        v_cvt_pk_bf16_f32 v110, v110, v110
        v_lshlrev_b32 v110, 16, v110
        """)
    g(f"""
    s_nop 1
    v_max_f32_dpp v111, v110, v110 row_ror:8 row_mask:0xf bank_mask:0xf
    s_nop 1
    v_max_f32_dpp v111, v111, v111 row_ror:4 row_mask:0xf bank_mask:0xf
    s_nop 1
    v_max_f32_dpp v111, v111, v111 row_ror:2 row_mask:0xf bank_mask:0xf
    s_nop 1
    v_max_f32_dpp v111, v111, v111 row_ror:1 row_mask:0xf bank_mask:0xf
    s_nop 0
    v_mov_b32 v112, v111
    s_nop 1
    v_permlane16_swap_b32 v111, v112
    s_nop 1
    v_max_f32 v111, v111, v112
    s_lshl_b32 {T1}, {WAVE}, 2
    v_lshl_add_u32 v112, v121, 4, {T1}
    v_mov_b32 v114, 1
    v_mov_b32 v113, 0
    s_mov_b32 exec_lo, 1
    s_mov_b32 exec_hi, 1
    ds_write_b32 v112, v111 offset:{MARR}
    s_mov_b64 exec, 1
    ds_add_u32 v113, v114 offset:{ML+28}
    s_mov_b64 exec, -1
    v_mov_b32 v127, v111
    v_mul_f32 v115, {T3}, v111
    v_fma_f32 v110, v110, {T3}, -v115
    v_exp_f32 v110, v110
    s_nop 0
    v_cvt_pk_bf16_f32 v111, v110, v110
    ds_write_b16 v122, v111
    ds_read_b128 v[116:119], v123
    v_lshlrev_b32 v110, 16, v111
    s_nop 1
    v_add_f32_dpp v110, v110, v110 row_ror:8 row_mask:0xf bank_mask:0xf
    s_nop 1
    v_add_f32_dpp v110, v110, v110 row_ror:4 row_mask:0xf bank_mask:0xf
    s_nop 1
    v_add_f32_dpp v110, v110, v110 row_ror:2 row_mask:0xf bank_mask:0xf
    s_nop 1
    v_add_f32_dpp v110, v110, v110 row_ror:1 row_mask:0xf bank_mask:0xf
    s_nop 0
    v_mov_b32 v112, v110
    s_nop 1
    v_permlane16_swap_b32 v110, v112
    s_nop 1
    v_add_f32 v125, v110, v112
    s_waitcnt lgkmcnt(0)
    """)
    for n in range(8):
        src = 116 + (n >> 1)
        sel = 102 + (4 if (n & 1) else 0)
        for r in range(4):
            g(f"v_perm_b32 v{42+4*n+r}, v{src}, v{src}, v{sel+r}")
    stamp(5)
    def wo_issue():
        g(f"""
        s_lshl_b32 {T0}, {HKV}, 8
        s_lshl_b32 {T1}, {B}, 6
        s_add_u32 {T0}, {T0}, {T1}
        s_lshl_b32 {T1}, {WAVE}, 2
        s_add_u32 {T0}, {T0}, {T1}
        s_mul_i32 {T0}, {T0}, 1152
        s_mul_i32 {T1}, {S}, 288
        s_add_u32 {T0}, {T0}, {T1}
        s_mul_i32 {T1}, {WAVE}, {4*288}
        s_add_u32 m0, {T1}, {W}
        s_mov_b32 exec_lo, -1
        s_mov_b32 exec_hi, 0xf
        buffer_load_dwordx4 v124, {sWO}, {T0} offen{NTW} lds
        s_add_u32 {T0}, {T0}, {2*1152}
        s_add_u32 m0, m0, {2*288}
        s_nop 0
        buffer_load_dwordx4 v124, {sWO}, {T0} offen{NTW} lds
        s_mov_b64 exec, -1
        """)
    for n in range(nq + 1, 16):
        if n == wopos:
            wo_issue()
        if depth2:
            g(f"s_waitcnt vmcnt({depth2-1})")
        stream_load(n)
    if wopos >= 16:
        wo_issue()
    g(f"""
    s_lshl_b32 {T0}, {HKV}, 4
    s_add_u32 {T0}, {T0}, {J}
    s_lshl_b32 {T1}, {T0}, 10
    s_add_u32 {T1}, {T1}, {WS_O}
    s_sub_u32 {T2}, {WAVE}, 9
    s_lshl_b32 {T0}, {T2}, 9
    s_add_u32 {T1}, {T1}, {T0}
    v_bfe_u32 v1, v0, 3, 1
    v_lshlrev_b32 v104, 8, v1
    v_and_b32 v1, 7, v0
    v_lshl_add_u32 v104, v1, 5, v104
    v_bfe_u32 v105, v0, 4, 1
    v_lshl_add_u32 v104, v105, 4, v104
    v_add_u32 v104, {T1}, v104
    v_lshrrev_b32 v1, 5, v0
    v_lshlrev_b32 v103, 13, v1
    v_and_b32 v1, 31, v0
    v_lshl_add_u32 v103, v1, 4, v103
    s_add_u32 {T0}, {T0}, {PART}
    v_add_u32 v103, {T0}, v103
    s_lshl_b32 {T0}, {HKV}, 4
    s_lshl_b32 {T1}, {WAVE}, 2
    s_add_u32 {T0}, {T0}, {T1}
    v_add_u32 v112, {T0}, v3
    v_lshlrev_b32 v110, 10, v112
    v_lshl_add_u32 v110, v2, 4, v110
    s_lshl_b32 {T0}, {B}, 8
    s_add_u32 {T0}, {T0}, {WS_O}
    v_add_u32 v110, {T0}, v110
    v_add_u32 v113, {T1}, v3
    v_mul_u32_u24 v117, 144, v113
    v_lshl_add_u32 v117, v2, 3, v117
    v_lshlrev_b32 v118, 3, v113
    v_lshl_add_u32 v118, v2, 2, v118
    v_mul_u32_u24 v1, 144, v2
    v_lshl_add_u32 v119, v3, 4, v1
    v_lshrrev_b32 v120, 2, v2
    v_lshl_add_u32 v120, v3, 3, v120
    v_mul_u32_u24 v120, 288, v120
    v_and_b32 v1, 3, v0
    v_lshl_add_u32 v120, v1, 3, v120
    s_lshl_b32 {T0}, {WAVE}, 5
    s_add_u32 {T0}, {T0}, {W}
    v_add_u32 v120, {T0}, v120
    v_lshlrev_b32 v121, 5, v3
    s_mul_i32 {T0}, {S}, {4*9*8192}
    s_lshl_b32 {T1}, {WAVE}, 13
    s_add_u32 {T0}, {T0}, {T1}
    s_lshl_b32 {T1}, {HKV}, 2
    s_add_u32 {T1}, {T1}, {B}
    s_lshl_b32 {T1}, {T1}, 7
    s_add_u32 {T0}, {T0}, {T1}
    s_add_u32 {T0}, {T0}, {WS_P}
    v_mul_u32_u24 v1, {9*8192}, v3
    v_lshl_add_u32 v1, v2, 3, v1
    v_add_u32 v122, {T0}, v1
    """)
    g("v_mov_b32 v1, 0")
    lds_spin("L_cnt2", ML+28, 16, 126, 1)
    g(f"""
    v_lshrrev_b32 v1, 5, v0
    v_lshlrev_b32 v126, 2, v1
    v_lshlrev_b32 v1, 6, v1
    ds_read_b128 v[74:77], v1 offset:{MARR}
    ds_read_b128 v[78:81], v1 offset:{MARR+16}
    ds_read_b128 v[82:85], v1 offset:{MARR+32}
    ds_read_b128 v[86:89], v1 offset:{MARR+48}
    s_waitcnt lgkmcnt(0)
    v_max3_f32 v74, v74, v75, v76
    v_max3_f32 v77, v77, v78, v79
    v_max3_f32 v80, v80, v81, v82
    v_max3_f32 v83, v83, v84, v85
    v_max3_f32 v86, v86, v87, v88
    v_max3_f32 v74, v74, v77, v80
    v_max3_f32 v83, v83, v86, v89
    v_max_f32 v74, v74, v83
    v_sub_f32 v75, v127, v74
    v_mul_f32 v75, {T3}, v75
    v_exp_f32 v75, v75
    s_nop 0
    v_mul_f32 v76, v75, v125
    s_mov_b32 exec_lo, 1
    s_mov_b32 exec_hi, 1
    ds_write_b32 v126, v74 offset:{ML}
    ds_add_f32 v126, v76 offset:{ML+8}
    s_mov_b64 exec, -1
    """)
    for n in range(8):
        g(f"s_waitcnt vmcnt({7-n+(2 if (8+n) < wopos else 0)})")
        g(f"v_mfma_f32_16x16x32_bf16 v[98:101], v[{42+4*n}:{45+4*n}], v[{VREG+4*n}:{VREG+4*n+3}], v[98:101]")
    stamp(6)
    g(f"""
    s_lshl_b32 {T0}, {WAVE}, 10
    s_add_u32 {T0}, {T0}, {PART}
    v_add_u32 v1, {T0}, v4
    s_nop 4
    v_mul_f32 v98, v75, v98
    v_mul_f32 v99, v75, v99
    v_mul_f32 v100, v75, v100
    v_mul_f32 v101, v75, v101
    ds_write_b128 v1, v[98:101]
    s_waitcnt lgkmcnt(0)
    s_barrier
    """)
    stamp(7)
    g(f"s_sub_u32 {T0}, {WAVE}, 9")
    g(f"s_cmp_lt_u32 {T0}, 2")
    g("s_cbranch_scc0 L_nopub")
    for w in range(8):
        g(f"ds_read_b128 v[{42+4*w}:{45+4*w}], v103 offset:{w*1024}")
    g(f"""
    s_lshl_b32 {T1}, {T0}, 2
    v_mov_b32 v1, {T1}
    ds_read_b32 v86, v1 offset:{ML}
    ds_read_b32 v87, v1 offset:{ML+8}
    v_mov_b32 v92, {TAG}
    v_cmp_eq_u32 vcc, 1, v105
    s_waitcnt lgkmcnt(6)
    v_pk_add_f32 v[42:43], v[42:43], v[46:47]
    v_pk_add_f32 v[44:45], v[44:45], v[48:49]
    v_pk_add_f32 v[50:51], v[50:51], v[54:55]
    v_pk_add_f32 v[52:53], v[52:53], v[56:57]
    s_waitcnt lgkmcnt(2)
    v_pk_add_f32 v[58:59], v[58:59], v[62:63]
    v_pk_add_f32 v[60:61], v[60:61], v[64:65]
    v_pk_add_f32 v[66:67], v[66:67], v[70:71]
    v_pk_add_f32 v[68:69], v[68:69], v[72:73]
    v_pk_add_f32 v[42:43], v[42:43], v[50:51]
    v_pk_add_f32 v[44:45], v[44:45], v[52:53]
    v_pk_add_f32 v[58:59], v[58:59], v[66:67]
    v_pk_add_f32 v[60:61], v[60:61], v[68:69]
    v_pk_add_f32 v[42:43], v[42:43], v[58:59]
    v_pk_add_f32 v[44:45], v[44:45], v[60:61]
    s_waitcnt lgkmcnt(0)
    v_mul_f32 v86, {T3}, v86
    v_mov_b32 v46, v42
    v_mov_b32 v47, v43
    v_mov_b32 v48, v44
    v_mov_b32 v49, v45
    v_cndmask_b32 v93, v86, v87, vcc
    v_permlane32_swap_b32 v42, v46
    v_permlane32_swap_b32 v43, v47
    v_permlane32_swap_b32 v44, v48
    v_permlane32_swap_b32 v45, v49
    s_nop 1
    v_add_f32 v42, v42, v46
    v_add_f32 v43, v43, v47
    v_add_f32 v44, v44, v48
    v_add_f32 v45, v45, v49
    v_cvt_pk_bf16_f32 v90, v42, v43
    v_cvt_pk_bf16_f32 v91, v44, v45
    s_mov_b32 exec_hi, 0
    global_store_dwordx4 v104, v[90:93], {WSB} sc1
    s_mov_b64 exec, -1
    """)
    stamp(8)
    g("s_waitcnt vmcnt(1)")
    g("s_barrier")
    g("s_branch L_wowait")
    g.lab("L_nopub")
    g("s_waitcnt vmcnt(0)")
    g("s_barrier")
    g(f"s_cmp_lt_u32 {WAVE}, 9")
    g("s_cbranch_scc0 L_wowait")
    g(f"""
    ds_read_b64_tr_b16 v[50:51], v120
    ds_read_b64_tr_b16 v[52:53], v120 offset:{4*288}
    ds_read_b64_tr_b16 v[54:55], v120 offset:{32*288}
    ds_read_b64_tr_b16 v[56:57], v120 offset:{36*288}
    v_mov_b32 v66, 0
    v_mov_b32 v67, 0
    v_mov_b32 v68, 0
    v_mov_b32 v69, 0
    v_mov_b32 v74, {TAG}
    v_mov_b32 v75, {TAG}
    """)
    g(f"s_cmp_lt_u32 {WAVE}, 4")
    g("s_cbranch_scc0 L_wowait")
    g(f"s_mov_b32 {T2}, 0")
    if ts:
        g("s_memrealtime s[96:97]")
        g("s_mov_b32 s98, 0")
    g.lab("L_opoll")
    g(f"""
    global_load_dwordx4 v[42:45], v110, {WSB} sc1
    s_add_u32 {T2}, {T2}, 1
    s_waitcnt vmcnt(0)
    """)
    if ts:
        g(f"s_cmp_eq_u32 {T2}, 1")
        g("s_cbranch_scc0 L_nf")
        g("s_memrealtime s[98:99]")
        g.lab("L_nf")
    g(f"""
    v_cmp_eq_u32 vcc, {TAG}, v44
    s_cmp_ge_u32 {T2}, {spin}
    s_cbranch_scc1 L_ook
    s_cmp_eq_u64 vcc, -1
    s_cbranch_scc0 L_opoll
    """)
    g.lab("L_ook")
    if ts:
        g(f"s_mov_b32 s88, {T2}")
        g("s_memrealtime s[92:93]")
    g(f"""
    ds_write_b64 v117, v[42:43] offset:{AIMG}
    s_mov_b32 exec_lo, 0x00030003
    s_mov_b32 exec_hi, 0x00030003
    ds_write_b32 v118, v45 offset:{STATS}
    s_mov_b64 exec, -1
    """)
    g.lab("L_wowait")
    g("s_waitcnt vmcnt(0) lgkmcnt(0)")
    if ts:
        g("s_memrealtime s[94:95]")
    g("s_barrier")
    stamp(9)
    g(f"s_cmp_lt_u32 {WAVE}, 9")
    g("s_cbranch_scc0 L_notproj")
    g(f"""
    ds_read_b128 v[58:61], v121 offset:{STATS}
    ds_read_b128 v[62:65], v121 offset:{STATS+16}
    ds_read_b128 v[42:45], v119 offset:{AIMG}
    ds_read_b128 v[46:49], v119 offset:{AIMG+64}
    s_waitcnt lgkmcnt(1)
    v_mfma_f32_16x16x32_bf16 v[66:69], v[42:45], v[50:53], v[66:69]
    s_waitcnt lgkmcnt(0)
    v_mfma_f32_16x16x32_bf16 v[66:69], v[46:49], v[54:57], v[66:69]
    v_max3_f32 v70, v58, v60, v62
    v_max_f32 v70, v70, v64
    v_sub_f32 v58, v58, v70
    v_sub_f32 v60, v60, v70
    v_sub_f32 v62, v62, v70
    v_sub_f32 v64, v64, v70
    v_exp_f32 v58, v58
    v_exp_f32 v60, v60
    v_exp_f32 v62, v62
    v_exp_f32 v64, v64
    s_nop 0
    v_mul_f32 v71, v58, v59
    v_fmac_f32 v71, v60, v61
    v_fmac_f32 v71, v62, v63
    v_fmac_f32 v71, v64, v65
    v_rcp_f32 v71, v71
    v_mul_f32 v72, v58, v66
    v_fmac_f32 v72, v60, v67
    v_fmac_f32 v72, v62, v68
    v_fmac_f32 v72, v64, v69
    v_mul_f32 v72, v72, v71
    s_nop 1
    v_mov_b32_dpp v73, v72 quad_perm:[1,0,3,2] row_mask:0xf bank_mask:0xf
    s_mov_b32 exec_lo, 0x55555555
    s_mov_b32 exec_hi, 0x55555555
    global_store_dwordx4 v122, v[72:75], {WSB} sc1
    s_mov_b64 exec, -1
    """)
    stamp(10)
    g("s_barrier")
    g("s_branch L_fin")
    g.lab("L_notproj")
    if ts:
        g(f"s_cmp_eq_u32 {WAVE}, 15")
        g("s_cbranch_scc1 L_isred")
        g("s_barrier")
        g("s_branch L_fin")
        g.lab("L_isred")
    g(f"""
    s_cmp_eq_u32 {WAVE}, 15
    s_cbranch_scc0 L_fin
    s_and_b32 {T0}, s2, 3
    s_bfe_u32 {T1}, s2, 0x20002
    s_lshr_b32 {T2}, s2, 4
    s_lshl_b32 {T3}, {T0}, 2
    s_add_u32 {T3}, {T3}, {T1}
    s_mul_i32 {T3}, {T3}, 9
    s_add_u32 {T3}, {T3}, {T2}
    s_lshl_b32 {T3}, {T3}, 13
    s_add_u32 {T3}, {T3}, {WS_P}
    v_add_u32 v110, {T3}, v4
    v_add_u32 v112, 4096, v110
    s_mul_i32 {T1}, {T1}, 1152
    s_mul_i32 {T0}, {T0}, 288
    s_add_u32 {T1}, {T1}, {T0}
    s_lshl_b32 {T2}, {T2}, 5
    s_add_u32 {T1}, {T1}, {T2}
    v_lshlrev_b32 v111, 2, v0
    v_add_u32 v111, {T1}, v111
    s_mov_b32 {T2}, 0
    s_barrier
    s_cmp_lt_u32 s2, 144
    s_cbranch_scc0 L_fin
    """)
    if ts: g("s_memrealtime s[96:97]")
    masked_poll2("L_pp", 110, 112, 42, T2)
    if ts: g("s_memrealtime s[94:95]")
    if ts: g(f"s_mov_b32 s86, {T2}")
    g("""
    v_pk_add_f32 v[42:43], v[42:43], v[46:47]
    v_pk_add_f32 v[50:51], v[50:51], v[54:55]
    v_pk_add_f32 v[58:59], v[58:59], v[62:63]
    v_pk_add_f32 v[66:67], v[66:67], v[70:71]
    v_pk_add_f32 v[42:43], v[42:43], v[50:51]
    v_pk_add_f32 v[58:59], v[58:59], v[66:67]
    s_nop 0
    v_pk_add_f32 v[42:43], v[42:43], v[58:59]
    """)
    g(f"""
    s_nop 1
    v_add_f32_dpp v42, v42, v42 row_ror:8 row_mask:0xf bank_mask:0xf
    v_add_f32_dpp v43, v43, v43 row_ror:8 row_mask:0xf bank_mask:0xf
    s_nop 0
    v_mov_b32 v44, v42
    v_mov_b32 v45, v43
    s_nop 0
    v_permlane16_swap_b32 v42, v44
    v_permlane16_swap_b32 v43, v45
    s_nop 0
    v_add_f32 v42, v42, v44
    v_add_f32 v43, v43, v45
    s_nop 0
    v_mov_b32 v44, v42
    v_mov_b32 v45, v43
    s_nop 0
    v_permlane32_swap_b32 v42, v44
    v_permlane32_swap_b32 v43, v45
    s_nop 0
    v_add_f32 v42, v42, v44
    v_add_f32 v43, v43, v45
    s_nop 0
    v_cvt_pk_bf16_f32 v42, v42, v43
    s_mov_b64 exec, 0xff
    buffer_store_dword v42, v111, {sOUT}, 0 offen
    s_mov_b64 exec, -1
    s_cmp_eq_u32 s2, 0
    s_cbranch_scc0 L_fin
    v_mov_b32 v1, 0
    v_mov_b32 v43, {TAG}
    s_mov_b64 exec, 1
    global_store_dword v1, v43, {WSB} sc1
    s_mov_b64 exec, -1
    """)
    g.lab("L_fin")
    if fixed:
        g.lab("L_hold")
        g("s_memrealtime s[90:91]")
        g("s_waitcnt lgkmcnt(0)")
        g("s_sub_u32 s92, s90, s94")
        g(f"s_cmp_lt_u32 s92, {fixed}")
        g("s_cbranch_scc1 L_hold")
    if ts:
        g("s_memrealtime s[90:91]")
        g("s_waitcnt lgkmcnt(0)")
    if dbgts:
        g(f"s_cmp_eq_u32 {WAVE}, 0")
        g("s_cbranch_scc1 L_dbg")
        g(f"s_cmp_eq_u32 {WAVE}, 9")
        g("s_cbranch_scc1 L_dbg")
        g(f"s_cmp_eq_u32 {WAVE}, 15")
        g("s_cbranch_scc0 L_end")
        g.lab("L_dbg")
        for _ in range(8):
            g("s_sleep 127")
        g("s_mov_b64 exec, 1")
        g("v_mov_b32 v1, 0")
        g("s_not_b32 s92, s64")
        g("v_mov_b32 v2, s92")
        g("global_atomic_umax v1, v2, s[16:17]")
        for k in range(1, 11):
            g(f"v_mov_b32 v2, s{64+2*k}")
            g(f"global_atomic_umax v1, v2, s[16:17] offset:{4*k}")
        g("v_mov_b32 v2, s90")
        g("global_atomic_umax v1, v2, s[16:17] offset:44")
        g("v_mov_b32 v2, s64")
        g("global_atomic_umax v1, v2, s[16:17] offset:48")
    elif ts:
        g(f"""
        s_lshl_b32 {T0}, s2, 4
        s_add_u32 {T0}, {T0}, {WAVE}
        s_lshl_b32 {T0}, {T0}, 7
        s_add_u32 {T0}, {T0}, {WS_TS}
        v_mov_b32 v1, {T0}
        s_mov_b64 exec, 1
        """)
        for k in range(13):
            g(f"v_mov_b32 v2, s{64+2*k}")
            g(f"global_store_dword v1, v2, {WSB} offset:{4*k}")
        g("v_mov_b32 v2, s90")
        g(f"global_store_dword v1, v2, {WSB} offset:60")
        g("v_mov_b32 v2, s92")
        g(f"global_store_dword v1, v2, {WSB} offset:56")
        g("v_mov_b32 v2, s94")
        g(f"global_store_dword v1, v2, {WSB} offset:52")
        g("v_mov_b32 v2, s96")
        g(f"global_store_dword v1, v2, {WSB} offset:64")
        g("v_mov_b32 v2, s98")
        g(f"global_store_dword v1, v2, {WSB} offset:68")
    if lite:
        g(f"""
        s_cmp_eq_u32 {WAVE}, 15
        s_cbranch_scc0 L_end
        s_memrealtime s[90:91]
        s_lshl_b32 {T0}, s2, 3
        s_add_u32 {T0}, {T0}, {WS_TS}
        v_mov_b32 v1, {T0}
        s_waitcnt lgkmcnt(0)
        v_mov_b32 v2, s64
        v_mov_b32 v3, s90
        s_mov_b64 exec, 1
        global_store_dwordx2 v1, v[2:3], {WSB}
        """)
    g.lab("L_end")
    g("s_endpgm")
    tail_txt = f"""
.section .rodata,"a"
.p2align 6
.amdhsa_kernel {NAME}
  .amdhsa_next_free_vgpr 128
  .amdhsa_next_free_sgpr 100
  .amdhsa_accum_offset 128
  .amdhsa_group_segment_fixed_size 0
  .amdhsa_kernarg_size 64
  .amdhsa_user_sgpr_count 2
  .amdhsa_user_sgpr_kernarg_segment_ptr 1
  .amdhsa_system_sgpr_workgroup_id_x 1
.end_amdhsa_kernel
"""
    return "\n".join(hdr) + "\n" + "\n".join(g.L) + tail_txt

if __name__ == "__main__":
    import argparse
    ap = argparse.ArgumentParser()
    ap.add_argument("-o", default="k.s")
    ap.add_argument("--depth", type=int, default=2)
    ap.add_argument("--nq", type=int, default=11)
    ap.add_argument("--depth2", type=int, default=0)
    ap.add_argument("--first", type=int, default=2)
    ap.add_argument("--ts", action="store_true")
    ap.add_argument("--mimic", action="store_true")
    ap.add_argument("--spin", type=int, default=100000)
    ap.add_argument("--defw", action="store_true")
    ap.add_argument("--dbgts", action="store_true")
    ap.add_argument("--fixed", type=int, default=0)
    ap.add_argument("--swapbs", action="store_true")
    ap.add_argument("--w0early", action="store_true")
    ap.add_argument("--nowarmwo", action="store_true")
    ap.add_argument("--wopos", type=int, default=16)
    ap.add_argument("--hkvxor", type=int, default=0)
    ap.add_argument("--hkvmap", type=int, default=0)
    ap.add_argument("--nocpf", action="store_true")
    ap.add_argument("--nopret", action="store_true")
    ap.add_argument("--pretq", action="store_true")
    ap.add_argument("--lite", action="store_true")
    ap.add_argument("--kvdef", action="store_true")
    ap.add_argument("--cpfn", type=int, default=256)
    ap.add_argument("--pretmod", default="")
    a = ap.parse_args()
    open(a.o, "w").write(gen(depth=a.depth, nq=a.nq, depth2=a.depth2, first=a.first, ts=a.ts, mimic=a.mimic, spin=a.spin, nt_w=not a.defw,
                             dbgts=a.dbgts, fixed=a.fixed, swapbs=a.swapbs, w0late=not a.w0early, warm_wo=not a.nowarmwo, wopos=a.wopos, hkvxor=a.hkvxor, hkvmap=a.hkvmap, cpf=not a.nocpf, pret=not a.nopret, pretq=a.pretq, pretmod=a.pretmod, lite=a.lite, kvmod='' if a.kvdef else ' nt', cpfn=a.cpfn))
```
